```python
import torch

def _softmax(x, axis=-1):
    return torch.softmax(x, dim=axis)
def _gelu(x):
    return torch.nn.functional.gelu(x, approximate="tanh")
def _silu(x):
    return torch.nn.functional.silu(x)
def _sigmoid(x):
    return torch.sigmoid(x)
def _layernorm(x, axis=-1, eps=1e-5):
    m = x.mean(dim=axis, keepdim=True)
    v = x.var(dim=axis, keepdim=True, unbiased=False)
    return (x - m) / torch.sqrt(v + eps)
def _scatter_add(tgt, idx, src, axis=0):
    return tgt.clone().index_add_(axis, idx, src)
def _segment_sum(src, seg, n):
    out = torch.zeros((n,) + src.shape[1:], dtype=src.dtype)
    return out.index_add_(0, seg, src)
def _pad(x, pw):
    flat = tuple(v for pair in reversed(pw) for v in pair)
    return torch.nn.functional.pad(x, flat)

kernel_name = 'concat_heads__mha_block_cached__gqa_block_cached__near_ridge'

def setup_inputs():

    _w = (lambda a: (lambda t: t.to(torch.bfloat16) if t.is_floating_point() else t)(torch.as_tensor(a)))
    def _A_setup():
        B, Sq, D = 16, 96, 448
        H, Sk, Dh = 16, 96, 256
        return {
            "x": _w((lambda *s: torch.randn(*s, dtype=torch.bfloat16) * 0.8)(B, Sq, D)),
            "k_cache": _w((lambda *s: torch.randn(*s, dtype=torch.bfloat16) * 0.8)(B, H, Sk, Dh)),
            "v_cache": _w((lambda *s: torch.randn(*s, dtype=torch.bfloat16) * 0.05)(B, H, Sk, Dh)),
            "wq": _w((lambda *s: torch.randn(*s, dtype=torch.bfloat16) * 0.8)(D, H * Dh) * (D ** -0.5)),
            "wo": _w((lambda *s: torch.randn(*s, dtype=torch.bfloat16) * 0.05)(H * Dh, D) * ((H * Dh) ** -0.5)),
        }
    _A_in = _A_setup()

    def _B_setup():
        B, Sq, D = 16, 96, 448
        Hq, Hkv, Sk, Dh = 16, 16, 96, 256
        assert Hq % Hkv == 0, (Hq, Hkv)
        return {
            "x": _w((lambda *s: torch.randn(*s, dtype=torch.bfloat16) * 0.8)(B, Sq, D)),
            "k_cache": _w((lambda *s: torch.randn(*s, dtype=torch.bfloat16) * 0.8)(B, Hkv, Sk, Dh)),
            "v_cache": _w((lambda *s: torch.randn(*s, dtype=torch.bfloat16) * 0.05)(B, Hkv, Sk, Dh)),
            "wq": _w((lambda *s: torch.randn(*s, dtype=torch.bfloat16) * 0.8)(D, Hq * Dh) * (D ** -0.5)),
            "wo": _w((lambda *s: torch.randn(*s, dtype=torch.bfloat16) * 0.05)(Hq * Dh, D) * ((Hq * Dh) ** -0.5)),
        }
    _B_in = _B_setup()

    return {
        "A_x": _A_in["x"],
        "A_k_cache": _A_in["k_cache"],
        "A_v_cache": _A_in["v_cache"],
        "A_wq": _A_in["wq"],
        "A_wo": _A_in["wo"],
        "B_x": _B_in["x"],
        "B_k_cache": _B_in["k_cache"],
        "B_v_cache": _B_in["v_cache"],
        "B_wq": _B_in["wq"],
        "B_wo": _B_in["wo"],
    }

def reference(A_x, A_k_cache, A_v_cache, A_wq, A_wo, B_x, B_k_cache, B_v_cache, B_wq, B_wo):
    def _A_ref(x, k_cache, v_cache, wq, wo):
        B, Sq, D = x.shape
        H, Dh = 16, 256
        q = (lambda x, *d: x.permute(*d))((x @ wq).reshape(B, Sq, H, Dh), 0, 2, 1, 3)
        scores = torch.einsum("bhqd,bhkd->bhqk", q, k_cache) * (Dh ** -0.5)
        p = _softmax(scores, axis=-1)
        o = torch.einsum("bhqk,bhkd->bhqd", p, v_cache)
        return (lambda x, *d: x.permute(*d))(o, 0, 2, 1, 3).reshape(B, Sq, H * Dh) @ wo

    def _B_ref(x, k_cache, v_cache, wq, wo):
        B, Sq, D = x.shape
        Hq, Dh = 16, 256
        Hkv = k_cache.shape[1]
        rep = Hq // Hkv
        q = (lambda x, *d: x.permute(*d))((x @ wq).reshape(B, Sq, Hq, Dh), 0, 2, 1, 3)
        k = (lambda x, n, axis: torch.repeat_interleave(x, n, dim=axis))(k_cache, rep, axis=1)
        v = (lambda x, n, axis: torch.repeat_interleave(x, n, dim=axis))(v_cache, rep, axis=1)
        scores = torch.einsum("bhqd,bhkd->bhqk", q, k) * (Dh ** -0.5)
        p = _softmax(scores, axis=-1)
        o = torch.einsum("bhqk,bhkd->bhqd", p, v)
        return (lambda x, *d: x.permute(*d))(o, 0, 2, 1, 3).reshape(B, Sq, Hq * Dh) @ wo

    a = _A_ref(A_x, A_k_cache, A_v_cache, A_wq, A_wo)
    b = _B_ref(B_x, B_k_cache, B_v_cache, B_wq, B_wo)
    return torch.concatenate([a, b], axis=-1)
```

```python
import re

def regs_of(op):
    op = op.strip()
    op = op.lstrip('-')
    m = re.fullmatch(r'abs\((.*)\)', op)
    if m: op = m.group(1)
    m = re.fullmatch(r'([vsa])(\d+)', op)
    if m: return [(m.group(1), int(m.group(2)))]
    m = re.fullmatch(r'([vsa])\[(\d+):(\d+)\]', op)
    if m: return [(m.group(1), i) for i in range(int(m.group(2)), int(m.group(3)) + 1)]
    if op == 'm0': return [('m', 0)]
    if op == 'vcc': return [('s', 106), ('s', 107)]
    if op == 'exec': return [('s', 126), ('s', 127)]
    return []

TRANS = ('v_exp_f32', 'v_log_f32', 'v_rcp_f32', 'v_rsq_f32', 'v_sqrt_f32', 'v_sin_f32', 'v_cos_f32')

class Ins:
    def __init__(self, text):
        self.text = text
        t = text.split(';')[0].strip()
        self.kind = 'other'; self.rd = set(); self.wr = set()
        self.A = self.B = self.C = self.D = None
        self.states = 1
        if t.endswith(':') or t.startswith('.') or t == '':
            self.kind = 'label'; self.states = 0; return
        parts = t.split(None, 1)
        mn = parts[0]; self.mn = mn
        rest = parts[1] if len(parts) > 1 else ''
        ops = [o.strip() for o in re.split(r',\s*(?![^\[]*\])', rest)] if rest else []
        if ops:
            last = ops[-1].split()
            ops[-1] = last[0]; self.mods = last[1:]
        else:
            self.mods = []
        R = lambda i: set(regs_of(ops[i])) if i < len(ops) else set()
        if mn == 's_nop':
            self.kind = 'nop'; self.states = int(ops[0], 0) + 1
        elif mn.startswith('v_mfma'):
            self.kind = 'mfma'; self.D = R(0); self.A = R(1); self.B = R(2); self.C = R(3)
            self.wr = set(self.D); self.rd = self.A | self.B | self.C
            self.passes = 4 if '16x16x32' in mn else 8
        elif mn.startswith('v_permlane'):
            self.kind = 'perm'; self.rd = R(0) | R(1); self.wr = R(0) | R(1)
        elif mn.startswith('v_readfirstlane') or mn.startswith('v_readlane'):
            self.kind = 'rdlane'; self.wr = R(0); self.rd = R(1) | R(2)
        elif mn.startswith('v_cmp'):
            self.kind = 'valu'; self.wr = R(0); self.rd = R(1) | R(2)
        elif mn.startswith('v_'):
            self.kind = 'trans' if mn.replace('_e32', '') in TRANS else 'valu'
            self.wr = R(0)
            for i in range(1, len(ops)): self.rd |= R(i)
            if 'fmac' in mn or 'dot2c' in mn: self.rd |= R(0)
            if mn.startswith('v_cndmask') and len(ops) == 3: self.rd |= set(regs_of('vcc'))
            if '_dpp' in mn: self.kind = 'dpp'
        elif mn.startswith('ds_read'):
            self.kind = 'ds_rd'; self.wr = R(0); self.rd = R(1)
        elif mn.startswith('ds_write'):
            self.kind = 'ds_wr'; self.rd = R(0) | R(1) | R(2)
        elif mn.startswith('buffer_load'):
            if 'lds' in self.mods:
                self.kind = 'dma'; self.rd = R(0) | R(1) | R(2) | {('m', 0)}
            else:
                self.kind = 'vm_ld'; self.wr = R(0); self.rd = R(1) | R(2) | R(3)
        elif mn.startswith('buffer_store'):
            self.kind = 'vm_st'; self.rd = R(0) | R(1) | R(2) | R(3); self.data = R(0)
            self.wide = ('x4' in mn or 'x3' in mn)
        elif mn.startswith('global_load'):
            self.kind = 'vm_ld'; self.wr = R(0); self.rd = R(1) | R(2)
        elif mn.startswith('global_store'):
            self.kind = 'vm_st'; self.rd = R(0) | R(1) | R(2); self.data = R(1)
            self.wide = ('x4' in mn or 'x3' in mn)
        elif mn.startswith('global_atomic') or mn.startswith('buffer_atomic'):
            self.kind = 'vm_ld'
            for i in range(0, len(ops)): self.rd |= R(i)
            if 'sc0' in self.mods: self.wr = R(0)
        elif mn.startswith('s_'):
            self.kind = 'salu'
            if mn.startswith(('s_cmp', 's_cbranch', 's_branch', 's_waitcnt', 's_barrier', 's_endpgm', 's_setprio', 's_sleep')):
                for i in range(len(ops)): self.rd |= R(i)
            else:
                self.wr = R(0)
                for i in range(1, len(ops)): self.rd |= R(i)

VALUK = ('valu', 'trans', 'perm', 'rdlane', 'dpp')
VMEMK = ('vm_ld', 'vm_st', 'dma')

def required(p, c):
    n = 0
    vw = {r for r in p.wr if r[0] in 'va'}
    sw = {r for r in p.wr if r[0] == 's'}
    if p.kind in VALUK:
        if c.kind == 'mfma' and vw & c.rd: n = max(n, 2)
        if c.kind in ('perm', 'dpp') and vw & c.rd: n = max(n, 2)
        if c.kind == 'rdlane' and vw & c.rd: n = max(n, 1)
        if p.kind == 'trans' and c.kind in VALUK and c.kind != 'trans' and vw & c.rd: n = max(n, 1)
        if sw:
            if c.kind in VMEMK and sw & c.rd: n = max(n, 5)
            if c.kind in VALUK and sw & c.rd: n = max(n, 2)
            if c.kind == 'rdlane' and sw & c.rd: n = max(n, 4)
            if c.kind == 'salu' and sw & c.rd: n = max(n, 1)
        if {('s', 126), ('s', 127)} & p.wr and c.kind == 'mfma': n = max(n, 4)
    if p.kind == 'mfma':
        big = 8 if p.passes == 4 else 12
        ovl = 6 if p.passes == 4 else 10
        war = 3 if p.passes == 4 else 7
        if c.kind == 'mfma':
            if p.D & (c.A | c.B): n = max(n, big)
            if p.D & c.C and not (p.D == c.C and p.passes == c.passes): n = max(n, ovl)
            if p.D & c.D and not (p.D == c.C): n = max(n, big)
        else:
            if p.D & (c.rd | c.wr): n = max(n, big)
            if c.kind in VALUK and p.C & c.wr: n = max(n, war)
    if p.kind == 'salu' and ('m', 0) in p.wr and c.kind == 'dma': n = max(n, 1)
    if p.kind == 'vm_st' and getattr(p, 'wide', False):
        if p.data & c.wr: n = max(n, 2)
    if p.kind == 'ds_wr' and c.kind in VALUK and (p.rd & c.wr): n = max(n, 1)
    return n

class Builder:
    def __init__(self):
        self.ins = []
        self.lgk_issued = 0
        self.lgk_done = 0
        self.loops = []
    def I(self, text):
        i = Ins(text)
        need = 0; dist = 0
        for p in reversed(self.ins):
            if p.kind == 'label' and p.text.startswith('@fence'): break
            req = required(p, i) if p.kind != 'label' else 0
            if req - dist > need: need = req - dist
            dist += p.states
            if dist >= 12: break
        if need > 0:
            self.ins.append(Ins(f"s_nop {need-1}"))
        self.ins.append(i)
        if i.kind in ('ds_rd', 'ds_wr'):
            self.lgk_issued += 1
            return self.lgk_issued
        return None
    def label(self, name):
        self.ins.append(Ins(name + ':'))
    def raw(self, text):
        x = Ins(''); x.text = text; self.ins.append(x)
    def wait_lgk(self, token):
        if token <= self.lgk_done: return
        n = self.lgk_issued - token
        if n > 15: n = 15;
        self.I(f"s_waitcnt lgkmcnt({n})")
        self.lgk_done = max(self.lgk_done, self.lgk_issued - n)
    def drain_lgk(self, force=False):
        if force or self.lgk_done < self.lgk_issued:
            self.I("s_waitcnt lgkmcnt(0)")
        self.lgk_done = self.lgk_issued
    def loop_begin(self, name):
        self.label(name); self.loops.append((name, len(self.ins)))
    def loop_end(self, branch_text):
        self.I(branch_text)
        name, start = self.loops.pop()
        body = self.ins[start:]
        for k, c in enumerate(body):
            pre = sum(x.states for x in body[:k])
            if pre >= 12: break
            dist = pre
            for p in reversed(body):
                if p.kind != 'label':
                    req = required(p, c)
                    assert req <= dist, f"loop wrap hazard in {name}: {p.text} -> {c.text} need {req} have {dist}"
                dist += p.states
                if dist >= 12: break
    def text(self):
        out = []
        for i in self.ins:
            if i.text.startswith('@fence'): continue
            out.append(i.text if i.kind == 'label' else '    ' + i.text)
        return "\n".join(out) + "\n"
```

```python
import sys, math, argparse
from asmb import Builder
NAME = "concat_heads__mha_block_cached__gqa_block_cached__near_ridge"

R = 65536; XBUF = 65536
WS_STAMP = 32 << 20
PART = 86016

class Opt: pass

def vr(a, n=4): return f"v[{a}:{a+n-1}]"

def prologue(b, o):
    I = b.I
    I("s_cmp_ge_u32 s2, 256"); I("s_cbranch_scc1 L_end")
    if o.stamp: I("s_memrealtime s[96:97]")
    I("s_load_dwordx8 s[4:11], s[0:1], 0")
    I("s_load_dwordx2 s[12:13], s[0:1], 32")
    I("s_load_dwordx8 s[16:23], s[0:1], 40")
    I("s_load_dwordx2 s[24:25], s[0:1], 72")
    I("s_load_dwordx2 s[26:27], s[0:1], 96")
    I("v_lshrrev_b32 v1, 6, v0")
    I("v_and_b32 v0, 63, v0")
    I("v_readfirstlane_b32 s3, v1")
    I("s_and_b32 s41, s2, 7")
    I("s_lshr_b32 s42, s2, 3")
    I("s_lshr_b32 s38, s41, 2")
    I("s_and_b32 s39, s41, 3"); I("s_lshl_b32 s39, s39, 1")
    I("s_and_b32 s43, s42, 1"); I("s_or_b32 s39, s39, s43")
    I("s_lshr_b32 s40, s42, 1")
    for srd, size in ((44, 1376256), (48, 12582912), (52, 12582912), (56, 3670016), (60, 3670016), (64, 64 << 20)):
        I(f"s_mov_b32 s{srd+2}, {size}"); I(f"s_mov_b32 s{srd+3}, 0x20000")
    I("s_waitcnt lgkmcnt(0)")
    I("s_cmp_eq_u32 s38, 0")
    for srd, a, bb in ((44, 4, 16), (48, 6, 18), (52, 8, 20), (56, 10, 22), (60, 12, 24)):
        I(f"s_cselect_b32 s{srd}, s{a}, s{bb}"); I(f"s_cselect_b32 s{srd+1}, s{a+1}, s{bb+1}")
    I("s_mov_b32 s64, s26"); I("s_mov_b32 s65, s27")
    I("s_cmp_ge_u32 s3, 6"); I("s_cbranch_scc1 L_KL")
    I("s_cmp_ge_u32 s3, 4"); I("s_cbranch_scc1 L_RL")

SX, SK, SV, SWQ, SWO, SWS = "s[44:47]", "s[48:51]", "s[52:55]", "s[56:59]", "s[60:63]", "s[64:67]"

class Stamps:
    def __init__(self, b, o): self.b = b; self.o = o; self.n = 0
    def mark(self):
        if not self.o.stamp: return
        assert self.n < 13
        self.b.I(f"s_memtime s[{70+2*self.n}:{71+2*self.n}]")
        self.b.drain_lgk(force=True)
        self.n += 1
    def dump(self):
        if not self.o.stamp: return
        I = self.b.I
        I("s_memrealtime s[98:99]")
        I("s_waitcnt lgkmcnt(0)")
        I("s_lshl_b32 s4, s2, 3"); I("s_add_u32 s4, s4, s3"); I("s_lshl_b32 s4, s4, 6"); I(f"s_add_u32 s4, s4, {WS_STAMP}")
        I("v_mov_b32 v1, 0")
        for k in range(self.n):
            I(f"v_mov_b32 v2, s{70+2*k}")
            I(f"buffer_store_dword v2, v1, {SWS}, s4 offen offset:{4*k}")
        I("v_mov_b32 v2, s96"); I(f"buffer_store_dword v2, v1, {SWS}, s4 offen offset:56")
        I("v_mov_b32 v2, s98"); I(f"buffer_store_dword v2, v1, {SWS}, s4 offen offset:60")

def interleave(b, mfmas, reads, first=2, per=1, pre=None):
    pass

def trbase(b, dst, tmp):
    I = b.I
    I(f"v_lshrrev_b32 v{dst}, 5, v0"); I(f"v_lshlrev_b32 v{dst}, 10, v{dst}")
    I(f"v_bfe_u32 v{tmp}, v0, 2, 3"); I(f"v_lshl_or_b32 v{dst}, v{tmp}, 7, v{dst}")
    I(f"v_bfe_u32 v{tmp}, v0, 3, 2"); I(f"v_lshl_or_b32 v{dst}, v{tmp}, 5, v{dst}")
    I(f"v_and_b32 v{tmp}, 3, v0"); I(f"v_lshl_or_b32 v{dst}, v{tmp}, 3, v{dst}")

def run_sched(b, mf, rd, first, per_gap):
    tok = {}
    ri = 0
    def emit_reads(n, idx):
        nonlocal ri
        k = 0
        while k < n and ri < len(rd) and rd[ri][2] <= idx:
            key, text, _ = rd[ri]
            tok[key] = b.I(text); ri += 1; k += 1
    emit_reads(first, 0)
    for i, (text, need) in enumerate(mf):
        for key in need:
            if key in tok: b.wait_lgk(tok[key])
            else:
                assert key is None or key not in [r[0] for r in rd], f"mfma {i} needs read {key} not yet issued"
        b.I(text)
        emit_reads(per_gap(i), i + 1)
    assert ri == len(rd), f"unissued reads {len(rd)-ri}"

MF = "v_mfma_f32_16x16x32_bf16"

def compute(b, o):
    I = b.I; st = Stamps(b, o)
    I("s_lshr_b32 s68, s3, 1"); I("s_and_b32 s69, s3, 1")
    ABUF = 8; BBUF = 40; QACC = 64
    qacc = lambda t, j: QACC + (t * 3 + j) * 4
    trbase(b, 1, 7)
    I("s_lshl_b32 s4, s68, 13")
    I("v_add_u32 v1, s4, v1")
    for j in (1, 2, 3): I(f"v_xor_b32 v{1+j}, {j<<5}, v1")
    I("v_bfe_u32 v5, v0, 3, 1"); I("v_lshlrev_b32 v5, 10, v5")
    I("v_and_b32 v7, 7, v0"); I("v_lshl_or_b32 v5, v7, 7, v5")
    I("v_lshrrev_b32 v7, 5, v0"); I("v_bfe_u32 v6, v0, 1, 2"); I("v_xor_b32 v7, v7, v6"); I("v_lshl_or_b32 v5, v7, 5, v5")
    I("v_bfe_u32 v7, v0, 4, 1"); I("v_lshl_or_b32 v5, v7, 4, v5")
    I("s_mul_i32 s4, s69, 6144"); I(f"s_add_u32 s4, s4, {XBUF}")
    I("v_add_u32 v5, s4, v5"); I("v_xor_b32 v6, 64, v5")
    for r in range(8, 256): I(f"v_mov_b32 v{r}, 0")
    I("s_mov_b32 s5, 12288")
    I("s_mov_b32 s6, 0")
    st.mark()
    def p1_stage(i, carried_only=False):
        u = i & 1; kp = i >> 1
        pu = (i - 1) & 1; pkp = ((i - 1) & 3) >> 1
        mf = []
        for f in (5, 6, 7):
            for j in range(3):
                a = qacc(8 * pu + f, j)
                mf.append((f"{MF} {vr(a)}, {vr(ABUF+4*f)}, {vr(BBUF+12*pkp+4*j)}, {vr(a)}", []))
        if carried_only:
            for t, _ in mf: I(t)
            return
        for f in range(5):
            for j in range(3):
                a = qacc(8 * u + f, j)
                mf.append((f"{MF} {vr(a)}, {vr(ABUF+4*f)}, {vr(BBUF+12*kp+4*j)}, {vr(a)}", [('A', f), ('B', j)]))
        rd = []
        def rdA(f):
            sg = f >> 2; j = f & 3
            mi = {5: 3, 6: 6, 7: 9}.get(f, 0)
            for e in range(2):
                rd.append((('A', f), f"ds_read_b64_tr_b16 {vr(ABUF+4*f+2*e,2)}, v{1+j} offset:{i*16384+sg*4096+e*2048}", mi))
        rdA(0)
        if u == 0:
            for j in range(3):
                rd.append((('B', j), f"ds_read_b128 {vr(BBUF+12*kp+4*j)}, v{5+kp} offset:{j*2048}", 0))
        for f in range(1, 8): rdA(f)
        I("s_barrier")
        run_sched(b, mf, rd, 2, lambda idx: (2 if idx % 3 == 0 else 1))
        b.drain_lgk()
    b.loop_begin("L_p1")
    for i in range(4):
        p1_stage(i)
        if i == 2:
            I("v_add_u32 v5, s5, v5"); I("v_add_u32 v6, s5, v6"); I("s_sub_u32 s5, 0, s5")
    I("s_add_u32 s6, s6, 1"); I("s_cmp_lt_u32 s6, 7")
    b.loop_end("s_cbranch_scc1 L_p1")
    I("s_barrier")
    p1_stage(0, carried_only=True)
    st.mark()
    QP = 40
    qp = lambda T, j: QP + (T * 3 + j) * 4
    for T in range(8):
        for j in range(3):
            d = qp(T, j); a0 = qacc(2 * T, j); a1 = qacc(2 * T + 1, j)
            I(f"v_cvt_pk_bf16_f32 v{d}, v{a0}, v{a0+1}"); I(f"v_cvt_pk_bf16_f32 v{d+1}, v{a0+2}, v{a0+3}")
            I(f"v_cvt_pk_bf16_f32 v{d+2}, v{a1}, v{a1+1}"); I(f"v_cvt_pk_bf16_f32 v{d+3}, v{a1+2}, v{a1+3}")
        for j in range(3):
            d = qp(T, j)
            I(f"v_permlane16_swap_b32 v{d}, v{d+2}"); I(f"v_permlane16_swap_b32 v{d+1}, v{d+3}")
    if o.dump == 'q':
        dump_regs(b, QP, 96)
    I("v_bfe_u32 v1, v0, 3, 1"); I("v_lshlrev_b32 v1, 10, v1")
    I("v_and_b32 v7, 7, v0"); I("v_lshl_or_b32 v1, v7, 7, v1")
    I("v_bfe_u32 v7, v0, 5, 1"); I("v_bfe_u32 v6, v0, 1, 1"); I("v_xor_b32 v7, v7, v6"); I("v_lshl_or_b32 v1, v7, 4, v1")
    I("v_bfe_u32 v7, v0, 4, 1"); I("v_lshl_or_b32 v1, v7, 5, v1")
    I("v_bfe_u32 v7, v0, 2, 1"); I("v_lshl_or_b32 v1, v7, 6, v1")
    I("s_mul_i32 s4, s68, 12288"); I(f"s_add_u32 s4, s4, {R}")
    I("v_add_u32 v1, s4, v1"); I("v_xor_b32 v2, 64, v1")
    I("v_add_u32 v3, 49152, v1"); I("v_add_u32 v4, 49152, v2")
    st.mark()
    SACC = 136; KBUF = 208
    sacc = lambda kt, j: SACC + (kt * 3 + j) * 4
    def krd(T, kt):
        dq = T >> 1; pos = (dq + 1) & 3
        off = pos * 24576 + kt * 2048
        reg = 1 + (T & 1)
        if off >= 49152: off -= 49152; reg += 2
        buf = KBUF + ((T & 1) * 6 + kt) * 4
        return f"ds_read_b128 {vr(buf)}, v{reg} offset:{off}"
    tok = {}
    for kt in range(6): tok[(0, kt)] = I(krd(0, kt))
    for T in range(8):
        if T == 4: I("s_barrier")
        for kt in range(6):
            b.wait_lgk(tok[(T, kt)])
            buf = KBUF + ((T & 1) * 6 + kt) * 4
            for j in range(3):
                a = sacc(kt, j)
                I(f"{MF} {vr(a)}, {vr(buf)}, {vr(qp(T,j))}, {'0' if T == 0 else vr(a)}")
                if j == 0 and T < 7: tok[(T + 1, kt)] = I(krd(T + 1, kt))
    b.drain_lgk()
    I("s_barrier")
    st.mark()
    PP = 208
    pp = lambda U, j: PP + (U * 3 + j) * 4
    I(f"s_mov_b32 s7, {hex(f32bits(math.log2(math.e) / 16.0))}")
    M = [8, 9, 10]; Tm = [11, 12, 13]; L = [14, 15, 16]
    vals = lambda j: [sacc(kt, j) + r for kt in range(6) for r in range(4)]
    for step in range(12):
        for j in range(3):
            v = vals(j)
            if step == 0: I(f"v_max3_f32 v{M[j]}, v{v[0]}, v{v[1]}, v{v[2]}")
            elif step < 11: I(f"v_max3_f32 v{M[j]}, v{M[j]}, v{v[2*step+1]}, v{v[2*step+2]}")
            else: I(f"v_max_f32 v{M[j]}, v{M[j]}, v{v[23]}")
    for sw in ("v_permlane16_swap_b32", "v_permlane32_swap_b32"):
        for j in range(3): I(f"v_mov_b32 v{Tm[j]}, v{M[j]}")
        for j in range(3): I(f"{sw} v{M[j]}, v{Tm[j]}")
        for j in range(3): I(f"v_max_f32 v{M[j]}, v{M[j]}, v{Tm[j]}")
    for j in range(3): I(f"v_mul_f32 v{M[j]}, s7, v{M[j]}")
    for k in range(24):
        for j in range(3):
            v = vals(j)[k]; I(f"v_fma_f32 v{v}, v{v}, s7, -v{M[j]}")
        for j in range(3):
            v = vals(j)[k]; I(f"v_exp_f32 v{v}, v{v}")
        if k >= 1:
            for j in range(3):
                v = vals(j)
                if k == 1: pass
                elif k == 2: I(f"v_add_f32 v{L[j]}, v{v[0]}, v{v[1]}")
                else: I(f"v_add_f32 v{L[j]}, v{L[j]}, v{v[k-1]}")
    for j in range(3): I(f"v_add_f32 v{L[j]}, v{L[j]}, v{vals(j)[23]}")
    for sw in ("v_permlane16_swap_b32", "v_permlane32_swap_b32"):
        for j in range(3): I(f"v_mov_b32 v{Tm[j]}, v{L[j]}")
        for j in range(3): I(f"{sw} v{L[j]}, v{Tm[j]}")
        for j in range(3): I(f"v_add_f32 v{L[j]}, v{L[j]}, v{Tm[j]}")
    for j in range(3): I(f"v_rcp_f32 v{L[j]}, v{L[j]}")
    for kt in range(6):
        for j in range(3):
            a = sacc(kt, j)
            for r in range(4): I(f"v_mul_f32 v{a+r}, v{a+r}, v{L[j]}")
            d = pp(kt >> 1, j) + (kt & 1) * 2
            I(f"v_cvt_pk_bf16_f32 v{d}, v{a}, v{a+1}"); I(f"v_cvt_pk_bf16_f32 v{d+1}, v{a+2}, v{a+3}")
    if o.dump == 'p':
        dump_regs(b, PP, 36)
    trbase(b, 1, 7)
    I("s_mul_i32 s4, s68, 49152"); I(f"s_add_u32 s4, s4, {R}")
    I("v_add_u32 v1, s4, v1")
    for j in (1, 2, 3): I(f"v_xor_b32 v{1+j}, {j<<5}, v1")
    st.mark()
    I("s_barrier")
    st.mark()
    VBUF = 8; NVB = 8; OACC = 136; OP = 40
    oacc = lambda t, j: OACC + ((t % 6) * 3 + j) * 4
    op = lambda kap, j: OP + (kap * 3 + j) * 4
    frs = [(t, U) for t in range(16) for U in range(3)]
    def vrd(n):
        t, U = frs[n]; dq = t >> 2; j = t & 3; buf = VBUF + (n % NVB) * 4
        I(f"ds_read_b64_tr_b16 {vr(buf,2)}, v{1+j} offset:{(dq*12+4*U)*1024}")
        return I(f"ds_read_b64_tr_b16 {vr(buf+2,2)}, v{1+j} offset:{(dq*12+4*U+2)*1024}")
    def ocvt(t):
        L_ = []
        for j in range(3):
            a = oacc(t, j); d = op(t >> 1, j) + (t & 1) * 2
            L_.append(f"v_cvt_pk_bf16_f32 v{d}, v{a}, v{a+1}"); L_.append(f"v_cvt_pk_bf16_f32 v{d+1}, v{a+2}, v{a+3}")
        return L_
    LA = 4
    tok = {}
    for n in range(LA): tok[n] = vrd(n)
    pend = []
    for n, (t, U) in enumerate(frs):
        b.wait_lgk(tok[n])
        buf = VBUF + (n % NVB) * 4
        for j in range(3):
            a = oacc(t, j)
            I(f"{MF} {vr(a)}, {vr(buf)}, {vr(pp(U,j))}, {'0' if U == 0 else vr(a)}")
            if j == 0 and n + LA < len(frs): tok[n + LA] = vrd(n + LA)
            if j >= 1 and U >= 1:
                for _ in range(2 if j == 1 else 1):
                    if pend: I(pend.pop(0))
        if U == 2: pend += ocvt(t)
    for x in pend: I(x)
    b.drain_lgk()
    I("v_lshlrev_b32 v5, 4, v0")
    I("s_mul_i32 s4, s68, 49152"); I("s_mul_i32 s5, s69, 3072"); I("s_add_u32 s4, s4, s5"); I(f"s_add_u32 s4, s4, {R}")
    I("v_add_u32 v5, s4, v5")
    st.mark()
    I("s_barrier")
    zs = list(range(136, 256))
    for kap in range(8):
        for j in range(3):
            I(f"ds_write_b128 v5, {vr(op(kap,j))} offset:{kap*6144+j*1024}")
            for _ in range(5):
                if zs: I(f"v_mov_b32 v{zs.pop(0)}, 0")
    trbase(b, 6, 7)
    I("s_lshl_b32 s4, s3, 12")
    I("v_add_u32 v1, s4, v6")
    for j in (1, 2, 3): I(f"v_xor_b32 v{1+j}, {j<<5}, v1")
    for m in range(3):
        I("s_mul_i32 s4, s3, 3"); I(f"s_add_u32 s4, s4, {m}")
        I("s_and_b32 s5, s4, 3"); I("s_lshl_b32 s5, s5, 5")
        I("s_lshr_b32 s4, s4, 2"); I("s_lshl_b32 s4, s4, 12")
        I(f"v_xor_b32 v{36+m}, s5, v6"); I(f"v_add_u32 v{36+m}, s4, v{36+m}")
    b.drain_lgk()
    I("v_lshlrev_b32 v5, 4, v0"); I(f"v_add_u32 v5, {R}, v5")
    for r in list(range(88, 136)) + list(range(8, 36)) + list(range(64, 88)): I(f"v_mov_b32 v{r}, 0")
    I("s_mov_b32 s6, 0")
    st.mark()
    A4 = 8; B4 = 40; ACC4 = 88
    acc4 = lambda m, q: ACC4 + (m * 6 + q) * 4
    def p4_stage(i, carried_only=False):
        u = i & 1; kp = i >> 1
        pkp = ((i - 1) & 3) >> 1
        carried = (5, 6) if u == 0 else (2, 3)
        ckp = pkp
        mine = (0, 1) if u == 0 else (4,)
        allf = (0, 1, 2, 3) if u == 0 else (4, 5, 6)
        mf = []
        for f in carried:
            for q in range(6):
                a = acc4(f, q)
                mf.append((f"{MF} {vr(a)}, {vr(A4+4*f)}, {vr(B4+24*ckp+4*q)}, {vr(a)}", []))
        if carried_only:
            for t, _ in mf: I(t)
            return
        for f in mine:
            for q in range(6):
                a = acc4(f, q)
                mf.append((f"{MF} {vr(a)}, {vr(A4+4*f)}, {vr(B4+24*kp+4*q)}, {vr(a)}", [('A', f), ('B', q)]))
        rd = []
        def rdA(f):
            areg = 1 + f if f < 4 else 36 + f - 4
            for e in range(2):
                rd.append((('A', f), f"ds_read_b64_tr_b16 {vr(A4+4*f+2*e,2)}, v{areg} offset:{i*16384+e*2048}", 0))
        rdA(allf[0])
        if u == 0:
            for q in range(6):
                rd.append((('B', q), f"ds_read_b128 {vr(B4+24*kp+4*q)}, v5 offset:{kp*6144+q*1024}", 0))
        for f in allf[1:]: rdA(f)
        I("s_barrier")
        run_sched(b, mf, rd, 2, lambda idx: 1)
        b.drain_lgk()
    b.loop_begin("L_p4")
    for i in range(4):
        p4_stage(i)
        if i == 2: I("v_add_u32 v5, 12288, v5")
    I("s_add_u32 s6, s6, 1"); I("s_cmp_lt_u32 s6, 8")
    b.loop_end("s_cbranch_scc1 L_p4")
    p4_stage(0, carried_only=True)
    st.mark()
    I("v_lshlrev_b32 v5, 4, v0")
    I("s_lshl_b32 s4, s38, 4"); I("s_add_u32 s4, s4, s40"); I("s_lshl_b32 s4, s4, 3"); I("s_add_u32 s4, s4, s39")
    I(f"s_mul_i32 s4, s4, {PART}")
    I(f"s_mul_i32 s5, s3, {4*3072}"); I("s_add_u32 s5, s5, s4")
    I(f"s_mul_i32 s7, s3, {3*3072}"); I("s_add_u32 s7, s7, s4"); I(f"s_add_u32 s7, s7, {16*3072}")
    k = 0
    for m in range(7):
        if m == 4: I("s_mov_b32 s5, s7")
        for jp in range(3):
            d = 40 + (k % 12) * 4; k += 1
            a0 = acc4(m, 2 * jp); a1 = acc4(m, 2 * jp + 1)
            I(f"v_cvt_pk_bf16_f32 v{d}, v{a0}, v{a0+1}"); I(f"v_cvt_pk_bf16_f32 v{d+1}, v{a0+2}, v{a0+3}")
            I(f"v_cvt_pk_bf16_f32 v{d+2}, v{a1}, v{a1+1}"); I(f"v_cvt_pk_bf16_f32 v{d+3}, v{a1+2}, v{a1+3}")
            if k == 13: I("s_waitcnt vmcnt(6)")
            I(f"buffer_store_dwordx4 {vr(d)}, v5, {SWS}, s5 offen offset:{jp*1024} {o.stflags}")
        I("s_add_u32 s5, s5, 3072")
    if o.stamp:
        I("s_waitcnt vmcnt(0)")
    st.mark()
    st.dump()
    I("s_endpgm")

def dump_regs(b, base, n):
    I = b.I
    I("s_lshl_b32 s4, s2, 2"); I("s_add_u32 s4, s4, s3"); I(f"s_mul_i32 s4, s4, {n*256}"); I(f"s_add_u32 s4, s4, {40<<20}")
    I("v_lshlrev_b32 v7, 2, v0")
    for r in range(n):
        I(f"buffer_store_dword v{base+r}, v7, {SWS}, s4 offen")
        I("s_add_u32 s4, s4, 256")
    I("s_waitcnt vmcnt(0)")

import struct
def f32bits(x): return struct.unpack("<I", struct.pack("<f", x))[0]

def src_pattern(b, dst, tmp, tmp2, pitch, kind):
    I = b.I
    if kind == 'wq':
        I(f"v_bfe_u32 v{tmp}, v0, 3, 2"); I(f"v_bfe_u32 v{tmp2}, v0, 5, 1"); I(f"v_lshl_or_b32 v{tmp}, v{tmp2}, 3, v{tmp}")
    else:
        I(f"v_lshrrev_b32 v{tmp}, 3, v0")
    I(f"v_mul_u32_u24 v{dst}, {pitch}, v{tmp}")
    if kind == 'k':
        I(f"v_bfe_u32 v{tmp}, v0, 4, 1"); I(f"v_bfe_u32 v{tmp2}, v0, 5, 1"); I(f"v_lshl_or_b32 v{tmp}, v{tmp2}, 2, v{tmp}")
    else:
        I(f"v_bfe_u32 v{tmp}, v0, 4, 2"); I(f"v_lshlrev_b32 v{tmp}, 1, v{tmp}")
    I(f"v_and_b32 v{tmp2}, 7, v0"); I(f"v_xor_b32 v{tmp}, v{tmp}, v{tmp2}")
    I(f"v_lshl_add_u32 v{dst}, v{tmp}, 4, v{dst}")

def ring_loader(b, o):
    I = b.I; st = Stamps(b, o)
    b.raw("@fence"); b.label("L_RL")
    I("s_sub_u32 s68, s3, 4")
    src_pattern(b, 1, 10, 11, 8192, 'wq')
    for i, ro in enumerate((0, 16, 4, 20)):
        if i: I(f"v_add_u32 v{1+i}, {ro*8192 - i*1024}, v1")
    src_pattern(b, 5, 10, 11, 896, 'w')
    for i in (1, 2, 3): I(f"v_add_u32 v{5+i}, {i*6144}, v5")
    I("s_lshl_b32 s4, s39, 10"); I("s_lshl_b32 s5, s68, 9"); I("s_add_u32 s4, s4, s5")
    I("s_lshl_b32 s8, s68, 13")
    I("s_mul_i32 s9, s40, 86016"); I(f"s_mul_i32 s5, s68, {6*7168}"); I("s_add_u32 s9, s9, s5")
    I("s_mul_i32 s10, s68, 6144"); I(f"s_add_u32 s10, s10, {XBUF}")
    I("s_mov_b32 s11, 12288")
    I(f"s_mul_i32 s12, s39, {512*896}")
    I("s_lshl_b32 s13, s68, 8")
    I(f"s_mul_i32 s15, s68, {2*8*896}")
    I("s_lshl_b32 s16, s68, 11")
    q = []
    def G_wq(slot, u, adv):
        for sg in range(2):
            I(f"s_add_u32 m0, s8, {slot*16384 + sg*4096}")
            I(f"s_add_u32 s5, s4, {u*256 + sg*128}")
            for i in range(4):
                I(f"buffer_load_dwordx4 v{1+i}, {SWQ}, s5 offen offset:{i*1024} lds")
        if adv: I(f"s_add_u32 s4, s4, {32*8192}")
        q.append(8)
    def X():
        I("s_mov_b32 m0, s10")
        for i in range(4): I(f"buffer_load_dwordx4 v{5+i}, {SX}, s9 offen offset:{i*1024} lds")
        I("s_add_u32 m0, s10, 4096"); I(f"s_add_u32 s5, s9, {4*7168}")
        for i in range(2): I(f"buffer_load_dwordx4 v{5+i}, {SX}, s5 offen offset:{i*1024} lds")
        I("s_add_u32 s9, s9, 128"); I("s_add_u32 s10, s10, s11"); I("s_sub_u32 s11, 0, s11")
    def G_wo(slot, u):
        if u == 0:
            for sg in range(2):
                I(f"s_add_u32 m0, s8, {slot*16384 + sg*4096}")
                I("s_add_u32 s5, s12, s13")
                if sg: I("s_add_u32 s5, s5, 128")
                for i in range(4):
                    I(f"buffer_load_dwordx4 v{5+i}, {SWO}, s5 offen offset:{i*1024} lds")
        else:
            I(f"s_add_u32 m0, s8, {slot*16384}")
            I("s_add_u32 s5, s12, s13"); I("s_add_u32 s5, s5, 512")
            for i in range(4):
                I(f"buffer_load_dwordx4 v{5+i}, {SWO}, s5 offen offset:{i*1024} lds")
            I(f"s_add_u32 m0, s16, {slot*16384 + 4096}")
            I("s_add_u32 s5, s12, s15"); I(f"s_add_u32 s5, s5, {512+128}")
            for i in range(2):
                I(f"buffer_load_dwordx4 v{5+i}, {SWO}, s5 offen offset:{i*1024} lds")
            I(f"s_add_u32 s12, s12, {32*896}")
    st.mark()
    X(); G_wq(0, 0, False); G_wq(1, 1, True); G_wq(2, 0, False)
    I("s_mov_b32 s6, 0")
    b.loop_begin("L_rl1")
    I("s_waitcnt vmcnt(16)"); I("s_barrier"); X(); G_wq(3, 1, True)
    I("s_waitcnt vmcnt(22)"); I("s_barrier"); G_wq(0, 0, False)
    I("s_waitcnt vmcnt(22)"); I("s_barrier"); G_wq(1, 1, True)
    I("s_waitcnt vmcnt(16)"); I("s_barrier"); G_wq(2, 0, False)
    I("s_add_u32 s6, s6, 1"); I("s_cmp_lt_u32 s6, 6")
    b.loop_end("s_cbranch_scc1 L_rl1")
    I("s_waitcnt vmcnt(16)"); I("s_barrier"); G_wq(3, 1, True)
    I("s_waitcnt vmcnt(16)"); I("s_barrier"); G_wo(0, 0)
    I("s_waitcnt vmcnt(16)"); I("s_barrier"); G_wo(1, 1)
    I("s_waitcnt vmcnt(14)"); I("s_barrier"); G_wo(2, 0)
    st.mark()
    I("s_barrier"); G_wo(3, 1)
    I("s_barrier")
    I("s_barrier")
    I("s_barrier")
    I("s_barrier")
    st.mark()
    I("s_waitcnt vmcnt(20)"); I("s_barrier")
    I("s_mov_b32 s6, 0")
    b.loop_begin("L_rl4")
    I("s_waitcnt vmcnt(14)"); I("s_barrier"); G_wo(0, 0)
    I("s_waitcnt vmcnt(14)"); I("s_barrier"); G_wo(1, 1)
    I("s_waitcnt vmcnt(14)"); I("s_barrier"); G_wo(2, 0)
    I("s_waitcnt vmcnt(14)"); I("s_barrier"); G_wo(3, 1)
    I("s_add_u32 s6, s6, 1"); I("s_cmp_lt_u32 s6, 7")
    b.loop_end("s_cbranch_scc1 L_rl4")
    I("s_waitcnt vmcnt(14)"); I("s_barrier")
    I("s_waitcnt vmcnt(6)"); I("s_barrier")
    I("s_waitcnt vmcnt(0)"); I("s_barrier")
    st.mark()
    st.dump()
    I("s_endpgm")

def kv_loader(b, o):
    I = b.I; st = Stamps(b, o)
    b.raw("@fence"); b.label("L_KL")
    I("s_sub_u32 s68, s3, 6")
    src_pattern(b, 1, 10, 11, 512, 'k')
    for i in (1, 2, 3): I(f"v_add_u32 v{1+i}, {i*3072}, v1")
    src_pattern(b, 5, 10, 11, 512, 'w')
    I("s_lshl_b32 s4, s40, 4"); I("s_lshl_b32 s5, s39, 1"); I("s_add_u32 s4, s4, s5"); I("s_add_u32 s4, s4, s68")
    I("s_mul_i32 s4, s4, 49152")
    I("s_mul_i32 s8, s68, 12288"); I(f"s_add_u32 s8, s8, {R}")
    KD = 16; VR = 64
    nt = " nt" if o.kvnt else ""
    loads = []
    for kg in range(3):
        for dq in range(3):
            for i in range(4):
                pre = []
                if i == 0:
                    pre = [f"s_add_u32 m0, s8, {(dq+1)*24576 + kg*4096}", f"s_add_u32 s5, s4, {kg*16384 + dq*128}"]
                loads.append(pre + [f"buffer_load_dwordx4 v{1+i}, {SK}, s5 offen offset:{i*1024}{nt} lds"])
        for i in range(4):
            ko = kg * 4 + i
            loads.append([f"s_add_u32 s7, s4, {ko*4096}", f"buffer_load_dwordx4 {vr(KD+4*ko)}, v1, {SK}, s7 offen offset:384{nt}"])
    for ko in range(12):
        for dq in range(4):
            pre = [f"s_add_u32 s7, s4, {ko*4096}"] if dq == 0 else []
            loads.append(pre + [f"buffer_load_dwordx4 {vr(VR+4*(dq*12+ko))}, v5, {SV}, s7 offen offset:{dq*128}{nt}"])
    li = 0
    def issue(n):
        nonlocal li
        for _ in range(n):
            if li < len(loads):
                for t in loads[li]: I(t)
                li += 1
    st.mark()
    if o.warm:
        warmup(b, o)
    issue(o.kpre)
    for n in range(28):
        I("s_barrier")
        issue(o.kfirst if n == 0 else o.kper)
    assert li == len(loads), li
    I("v_lshlrev_b32 v6, 4, v0"); I("v_add_u32 v7, s8, v6")
    I("s_mul_i32 s5, s68, 49152"); I(f"s_add_u32 s5, s5, {R}"); I("v_add_u32 v8, s5, v6")
    I("s_waitcnt vmcnt(48)")
    st.mark()
    I("s_barrier")
    for ko in range(12): I(f"ds_write_b128 v7, {vr(KD+4*ko)} offset:{ko*1024}")
    b.drain_lgk()
    I("s_barrier")
    I("s_barrier")
    st.mark()
    for ko in range(12):
        I(f"s_waitcnt vmcnt({44-4*ko})")
        for dq in range(4):
            I(f"ds_write_b128 v8, {vr(VR+4*(dq*12+ko))} offset:{(dq*12+ko)*1024}")
    b.drain_lgk()
    st.mark()
    I("s_barrier")
    st.dump()
    I("s_endpgm")

def warmup(b, o):
    I = b.I
    I("v_lshlrev_b32 v9, 7, v0")
    I("s_lshl_b32 s5, s43, 1"); I("s_add_u32 s5, s5, s68"); I(f"s_mul_i32 s5, s5, {168*128}")
    I("s_mul_i32 s7, s40, 86016"); I("s_add_u32 s5, s5, s7")
    for i in range(3):
        I(f"buffer_load_dword v{12}, v9, {SX}, s5 offen")
        I("s_add_u32 s5, s5, 8192")
    I("v_lshrrev_b32 v13, 3, v0"); I("v_lshlrev_b32 v13, 13, v13"); I("v_and_b32 v14, 7, v0"); I("v_lshl_or_b32 v13, v14, 7, v13")
    I("s_mul_i32 s5, s40, 28"); I("s_mul_i32 s7, s68, 14"); I("s_add_u32 s5, s5, s7"); I("s_lshl_b32 s5, s5, 13")
    I("s_lshl_b32 s7, s39, 10"); I("s_add_u32 s5, s5, s7")
    for i in range(2):
        I(f"buffer_load_dword v{12}, v13, {SWQ}, s5 offen")
        I("s_add_u32 s5, s5, 65536")
    I(f"s_mul_i32 s5, s39, {512*896}"); I("s_mul_i32 s7, s40, 28672"); I("s_add_u32 s5, s5, s7")
    I("s_mul_i32 s7, s68, 14336"); I("s_add_u32 s5, s5, s7")
    for i in range(2):
        I(f"buffer_load_dword v{12}, v9, {SWO}, s5 offen")
        I("s_add_u32 s5, s5, 8192")

def reduce_kernel(b, o):
    I = b.I
    b.raw("@fence")
    b.raw(".p2align 8"); b.raw(".type red_kernel,@function"); b.label("red_kernel")
    I("s_cmp_ge_u32 s2, 336"); I("s_cbranch_scc1 L_rend")
    I("s_load_dwordx2 s[4:5], s[0:1], 80")
    I("s_load_dwordx2 s[8:9], s[0:1], 96")
    I("v_lshrrev_b32 v1, 6, v0"); I("v_and_b32 v0, 63, v0"); I("v_readfirstlane_b32 s3, v1")
    I("s_lshl_b32 s12, s2, 2"); I("s_add_u32 s12, s12, s3")
    I(f"s_mov_b32 s13, {(2**32 + 13)//14 + 0}")
    I("s_mul_hi_u32 s14, s12, s13")
    I("s_mul_i32 s15, s14, 14"); I("s_sub_u32 s15, s12, s15")
    I(f"s_mov_b32 s13, {(2**32 + 2)//3}")
    I("s_mul_hi_u32 s16, s14, s13")
    I("s_mul_i32 s17, s16, 3"); I("s_sub_u32 s17, s14, s17")
    I("s_mov_b32 s6, 2752512"); I("s_mov_b32 s7, 0x20000")
    I(f"s_mov_b32 s10, {256*PART}"); I("s_mov_b32 s11, 0x20000")
    I(f"s_mul_i32 s18, s16, {8*PART}"); I("s_mul_i32 s19, s15, 6144"); I("s_add_u32 s18, s18, s19")
    I("s_lshl_b32 s19, s17, 10"); I("s_add_u32 s18, s18, s19")
    I("v_lshlrev_b32 v2, 4, v0")
    I("s_waitcnt lgkmcnt(0)")
    for p in range(8):
        I(f"buffer_load_dwordx4 {vr(8+8*p)}, v2, s[8:11], s18 offen {o.ldflags}")
        I(f"buffer_load_dwordx4 {vr(12+8*p)}, v2, s[8:11], s18 offen offset:3072 {o.ldflags}")
        I(f"s_add_u32 s18, s18, {PART}")
    I("s_and_b32 s19, s16, 15"); I("s_mul_i32 s19, s19, 96"); I("s_lshl_b32 s20, s17, 5"); I("s_add_u32 s19, s19, s20")
    I("s_mul_i32 s19, s19, 1792")
    I("s_lshr_b32 s20, s16, 4"); I("s_mul_i32 s20, s20, 896"); I("s_add_u32 s19, s19, s20")
    I("s_lshl_b32 s20, s15, 6"); I("s_add_u32 s19, s19, s20")
    I("s_add_u32 s21, s19, 28672")
    I("v_and_b32 v3, 15, v0"); I("v_mul_u32_u24 v3, 1792, v3")
    I("v_bfe_u32 v4, v0, 5, 1"); I("v_lshl_add_u32 v3, v4, 4, v3")
    I("v_bfe_u32 v4, v0, 4, 1"); I("v_lshl_add_u32 v3, v4, 5, v3")
    I("s_mov_b32 s22, 0xffff0000")
    AC = 72
    for p in range(8):
        I(f"s_waitcnt vmcnt({14-2*p})")
        for r in range(8):
            src = 8 + 8 * p + r
            if p == 0:
                I(f"v_lshlrev_b32 v{AC+2*r}, 16, v{src}"); I(f"v_and_b32 v{AC+2*r+1}, s22, v{src}")
            else:
                I(f"v_lshlrev_b32 v5, 16, v{src}"); I(f"v_and_b32 v6, s22, v{src}")
                I(f"v_add_f32 v{AC+2*r}, v{AC+2*r}, v5"); I(f"v_add_f32 v{AC+2*r+1}, v{AC+2*r+1}, v6")
    for h in range(2):
        d = 8 + 4 * h
        for k, r in enumerate((2 * h, 2 * h + 1, 4 + 2 * h, 5 + 2 * h)):
            I(f"v_cvt_pk_bf16_f32 v{d+k}, v{AC+2*r}, v{AC+2*r+1}")
    for h in range(2):
        d = 8 + 4 * h
        I(f"v_permlane16_swap_b32 v{d}, v{d+2}"); I(f"v_permlane16_swap_b32 v{d+1}, v{d+3}")
    I("buffer_store_dwordx4 v[8:11], v3, s[4:7], s19 offen")
    I("buffer_store_dwordx4 v[12:15], v3, s[4:7], s21 offen")
    b.label("L_rend")
    I("s_endpgm")

def kd(name, nv, ns):
    return f""".amdhsa_kernel {name}
  .amdhsa_next_free_vgpr {nv}
  .amdhsa_next_free_sgpr {ns}
  .amdhsa_accum_offset {(nv+3)//4*4}
  .amdhsa_group_segment_fixed_size 0
  .amdhsa_kernarg_size 104
  .amdhsa_user_sgpr_count 2
  .amdhsa_user_sgpr_kernarg_segment_ptr 1
  .amdhsa_system_sgpr_workgroup_id_x 1
.end_amdhsa_kernel
"""

def gen(o):
    b = Builder()
    hdr = f"""; fused attention block: K1 = Qproj+attn+Oproj partials (2 heads / WG), K2 = reduce over head pairs
; @launch kernel={NAME}_kernel grid=(256,1,1) block=(512,1,1) lds=163840
; @launch kernel=red_kernel grid=(336,1,1) block=(256,1,1) lds=0
.amdgcn_target "amdgcn-amd-amdhsa--gfx950"
.text
.globl {NAME}_kernel
.p2align 8
.type {NAME}_kernel,@function
"""
    b.label(f"{NAME}_kernel")
    prologue(b, o)
    compute(b, o)
    ring_loader(b, o)
    kv_loader(b, o)
    b.label("L_end"); b.I("s_endpgm")
    reduce_kernel(b, o)
    tail = '.section .rodata,"a"\n.p2align 6\n' + kd(f"{NAME}_kernel", 256, 100) + ".p2align 6\n" + kd("red_kernel", 88, 32)
    return hdr + b.text() + tail

if __name__ == "__main__":
    ap = argparse.ArgumentParser()
    ap.add_argument("-o", default="cdna_kernels/" + NAME + ".s")
    ap.add_argument("--stamp", action="store_true")
    ap.add_argument("--dump", default="")
    ap.add_argument("--kvnt", type=int, default=0)
    ap.add_argument("--warm", type=int, default=1)
    ap.add_argument("--kpre", type=int, default=0)
    ap.add_argument("--kfirst", type=int, default=24)
    ap.add_argument("--kper", type=int, default=3)
    ap.add_argument("--stflags", default="")
    ap.add_argument("--ldflags", default="")
    o = ap.parse_args()
    open(o.o, "w").write(gen(o))
```

```python
import sys, math, argparse
from asmb import Builder
NAME = "concat_heads__mha_block_cached__gqa_block_cached__near_ridge"

R = 65536; XBUF = 65536
WS_STAMP = 32 << 20
PART = 86016

class Opt: pass

def vr(a, n=4): return f"v[{a}:{a+n-1}]"

def prologue(b, o):
    I = b.I
    I("s_cmp_ge_u32 s2, 256"); I("s_cbranch_scc1 L_end")
    if o.stamp: I("s_memrealtime s[96:97]")
    I("s_load_dwordx8 s[4:11], s[0:1], 0")
    I("s_load_dwordx2 s[12:13], s[0:1], 32")
    I("s_load_dwordx8 s[16:23], s[0:1], 40")
    I("s_load_dwordx2 s[24:25], s[0:1], 72")
    I("s_load_dwordx2 s[26:27], s[0:1], 96")
    I("v_lshrrev_b32 v1, 6, v0")
    I("v_and_b32 v0, 63, v0")
    I("v_readfirstlane_b32 s3, v1")
    I("s_and_b32 s41, s2, 7")
    I("s_lshr_b32 s42, s2, 3")
    I("s_lshr_b32 s38, s41, 2")
    I("s_and_b32 s39, s41, 3"); I("s_lshl_b32 s39, s39, 1")
    I("s_and_b32 s43, s42, 1"); I("s_or_b32 s39, s39, s43")
    I("s_lshr_b32 s40, s42, 1")
    for srd, size in ((44, 1376256), (48, 12582912), (52, 12582912), (56, 3670016), (60, 3670016), (64, 64 << 20)):
        I(f"s_mov_b32 s{srd+2}, {size}"); I(f"s_mov_b32 s{srd+3}, 0x20000")
    I("s_waitcnt lgkmcnt(0)")
    I("s_cmp_eq_u32 s38, 0")
    for srd, a, bb in ((44, 4, 16), (48, 6, 18), (52, 8, 20), (56, 10, 22), (60, 12, 24)):
        I(f"s_cselect_b32 s{srd}, s{a}, s{bb}"); I(f"s_cselect_b32 s{srd+1}, s{a+1}, s{bb+1}")
    I("s_mov_b32 s64, s26"); I("s_mov_b32 s65, s27")
    I("s_cmp_ge_u32 s3, 6"); I("s_cbranch_scc1 L_KL")
    I("s_cmp_ge_u32 s3, 4"); I("s_cbranch_scc1 L_RL")

SX, SK, SV, SWQ, SWO, SWS = "s[44:47]", "s[48:51]", "s[52:55]", "s[56:59]", "s[60:63]", "s[64:67]"

class Stamps:
    def __init__(self, b, o): self.b = b; self.o = o; self.n = 0
    def mark(self):
        if not self.o.stamp: return
        assert self.n < 13
        self.b.I(f"s_memtime s[{70+2*self.n}:{71+2*self.n}]")
        self.b.drain_lgk(force=True)
        self.n += 1
    def dump(self):
        if not self.o.stamp: return
        I = self.b.I
        I("s_memrealtime s[98:99]")
        I("s_waitcnt lgkmcnt(0)")
        I("s_lshl_b32 s4, s2, 3"); I("s_add_u32 s4, s4, s3"); I("s_lshl_b32 s4, s4, 6"); I(f"s_add_u32 s4, s4, {WS_STAMP}")
        I("v_mov_b32 v1, 0")
        for k in range(self.n):
            I(f"v_mov_b32 v2, s{70+2*k}")
            I(f"buffer_store_dword v2, v1, {SWS}, s4 offen offset:{4*k}")
        I("v_mov_b32 v2, s96"); I(f"buffer_store_dword v2, v1, {SWS}, s4 offen offset:56")
        I("v_mov_b32 v2, s98"); I(f"buffer_store_dword v2, v1, {SWS}, s4 offen offset:60")

def interleave(b, mfmas, reads, first=2, per=1, pre=None):
    pass

def trbase(b, dst, tmp):
    I = b.I
    I(f"v_lshrrev_b32 v{dst}, 5, v0"); I(f"v_lshlrev_b32 v{dst}, 10, v{dst}")
    I(f"v_bfe_u32 v{tmp}, v0, 2, 3"); I(f"v_lshl_or_b32 v{dst}, v{tmp}, 7, v{dst}")
    I(f"v_bfe_u32 v{tmp}, v0, 3, 2"); I(f"v_lshl_or_b32 v{dst}, v{tmp}, 5, v{dst}")
    I(f"v_and_b32 v{tmp}, 3, v0"); I(f"v_lshl_or_b32 v{dst}, v{tmp}, 3, v{dst}")

def run_sched(b, mf, rd, first, per_gap):
    tok = {}
    ri = 0
    def emit_reads(n, idx):
        nonlocal ri
        k = 0
        while k < n and ri < len(rd) and rd[ri][2] <= idx:
            key, text, _ = rd[ri]
            tok[key] = b.I(text); ri += 1; k += 1
    emit_reads(first, 0)
    for i, (text, need) in enumerate(mf):
        for key in need:
            if key in tok: b.wait_lgk(tok[key])
            else:
                assert key is None or key not in [r[0] for r in rd], f"mfma {i} needs read {key} not yet issued"
        b.I(text)
        emit_reads(per_gap(i), i + 1)
    assert ri == len(rd), f"unissued reads {len(rd)-ri}"

MF = "v_mfma_f32_16x16x32_bf16"

def compute(b, o):
    I = b.I; st = Stamps(b, o)
    I("s_lshr_b32 s68, s3, 1"); I("s_and_b32 s69, s3, 1")
    ABUF = 8; BBUF = 40; QACC = 64
    qacc = lambda t, j: QACC + (t * 3 + j) * 4
    trbase(b, 1, 7)
    I("s_lshl_b32 s4, s68, 13")
    I("v_add_u32 v1, s4, v1")
    for j in (1, 2, 3): I(f"v_xor_b32 v{1+j}, {j<<5}, v1")
    I("v_bfe_u32 v5, v0, 3, 1"); I("v_lshlrev_b32 v5, 10, v5")
    I("v_and_b32 v7, 7, v0"); I("v_lshl_or_b32 v5, v7, 7, v5")
    I("v_lshrrev_b32 v7, 5, v0"); I("v_bfe_u32 v6, v0, 1, 2"); I("v_xor_b32 v7, v7, v6"); I("v_lshl_or_b32 v5, v7, 5, v5")
    I("v_bfe_u32 v7, v0, 4, 1"); I("v_lshl_or_b32 v5, v7, 4, v5")
    I("s_mul_i32 s4, s69, 6144"); I(f"s_add_u32 s4, s4, {XBUF}")
    I("v_add_u32 v5, s4, v5"); I("v_xor_b32 v6, 64, v5")
    for r in range(8, 256): I(f"v_mov_b32 v{r}, 0")
    I("s_mov_b32 s5, 12288")
    I("s_mov_b32 s6, 0")
    st.mark()
    def p1_stage(i, carried_only=False):
        u = i & 1; kp = i >> 1
        pu = (i - 1) & 1; pkp = ((i - 1) & 3) >> 1
        mf = []
        for f in (5, 6, 7):
            for j in range(3):
                a = qacc(8 * pu + f, j)
                mf.append((f"{MF} {vr(a)}, {vr(ABUF+4*f)}, {vr(BBUF+12*pkp+4*j)}, {vr(a)}", []))
        if carried_only:
            for t, _ in mf: I(t)
            return
        for f in range(5):
            for j in range(3):
                a = qacc(8 * u + f, j)
                mf.append((f"{MF} {vr(a)}, {vr(ABUF+4*f)}, {vr(BBUF+12*kp+4*j)}, {vr(a)}", [('A', f), ('B', j)]))
        rd = []
        def rdA(f):
            sg = f >> 2; j = f & 3
            mi = {5: 3, 6: 6, 7: 9}.get(f, 0)
            for e in range(2):
                rd.append((('A', f), f"ds_read_b64_tr_b16 {vr(ABUF+4*f+2*e,2)}, v{1+j} offset:{i*16384+sg*4096+e*2048}", mi))
        rdA(0)
        if u == 0:
            for j in range(3):
                rd.append((('B', j), f"ds_read_b128 {vr(BBUF+12*kp+4*j)}, v{5+kp} offset:{j*2048}", 0))
        for f in range(1, 8): rdA(f)
        I("s_barrier")
        run_sched(b, mf, rd, 2, lambda idx: (2 if idx % 3 == 0 else 1))
        b.drain_lgk()
    b.loop_begin("L_p1")
    for i in range(4):
        p1_stage(i)
        if i == 2:
            I("v_add_u32 v5, s5, v5"); I("v_add_u32 v6, s5, v6"); I("s_sub_u32 s5, 0, s5")
    I("s_add_u32 s6, s6, 1"); I("s_cmp_lt_u32 s6, 7")
    b.loop_end("s_cbranch_scc1 L_p1")
    I("s_barrier")
    p1_stage(0, carried_only=True)
    st.mark()
    QP = 40
    qp = lambda T, j: QP + (T * 3 + j) * 4
    for T in range(8):
        for j in range(3):
            d = qp(T, j); a0 = qacc(2 * T, j); a1 = qacc(2 * T + 1, j)
            I(f"v_cvt_pk_bf16_f32 v{d}, v{a0}, v{a0+1}"); I(f"v_cvt_pk_bf16_f32 v{d+1}, v{a0+2}, v{a0+3}")
            I(f"v_cvt_pk_bf16_f32 v{d+2}, v{a1}, v{a1+1}"); I(f"v_cvt_pk_bf16_f32 v{d+3}, v{a1+2}, v{a1+3}")
        for j in range(3):
            d = qp(T, j)
            I(f"v_permlane16_swap_b32 v{d}, v{d+2}"); I(f"v_permlane16_swap_b32 v{d+1}, v{d+3}")
    if o.dump == 'q':
        dump_regs(b, QP, 96)
    I("v_bfe_u32 v1, v0, 3, 1"); I("v_lshlrev_b32 v1, 10, v1")
    I("v_and_b32 v7, 7, v0"); I("v_lshl_or_b32 v1, v7, 7, v1")
    I("v_bfe_u32 v7, v0, 5, 1"); I("v_bfe_u32 v6, v0, 1, 1"); I("v_xor_b32 v7, v7, v6"); I("v_lshl_or_b32 v1, v7, 4, v1")
    I("v_bfe_u32 v7, v0, 4, 1"); I("v_lshl_or_b32 v1, v7, 5, v1")
    I("v_bfe_u32 v7, v0, 2, 1"); I("v_lshl_or_b32 v1, v7, 6, v1")
    I("s_mul_i32 s4, s68, 12288"); I(f"s_add_u32 s4, s4, {R}")
    I("v_add_u32 v1, s4, v1"); I("v_xor_b32 v2, 64, v1")
    I("v_add_u32 v3, 49152, v1"); I("v_add_u32 v4, 49152, v2")
    st.mark()
    SACC = 136; KBUF = 208
    sacc = lambda kt, j: SACC + (kt * 3 + j) * 4
    def krd(T, kt):
        dq = T >> 1; pos = (dq + 1) & 3
        off = pos * 24576 + kt * 2048
        reg = 1 + (T & 1)
        if off >= 49152: off -= 49152; reg += 2
        buf = KBUF + ((T & 1) * 6 + kt) * 4
        return f"ds_read_b128 {vr(buf)}, v{reg} offset:{off}"
    tok = {}
    for kt in range(6): tok[(0, kt)] = I(krd(0, kt))
    for T in range(8):
        if T == 4: I("s_barrier")
        for kt in range(6):
            b.wait_lgk(tok[(T, kt)])
            buf = KBUF + ((T & 1) * 6 + kt) * 4
            for j in range(3):
                a = sacc(kt, j)
                I(f"{MF} {vr(a)}, {vr(buf)}, {vr(qp(T,j))}, {'0' if T == 0 else vr(a)}")
                if j == 0 and T < 7: tok[(T + 1, kt)] = I(krd(T + 1, kt))
    b.drain_lgk()
    I("s_barrier")
    st.mark()
    PP = 208
    pp = lambda U, j: PP + (U * 3 + j) * 4
    I(f"s_mov_b32 s7, {hex(f32bits(math.log2(math.e) / 16.0))}")
    M = [8, 9, 10]; Tm = [11, 12, 13]; L = [14, 15, 16]
    vals = lambda j: [sacc(kt, j) + r for kt in range(6) for r in range(4)]
    for step in range(12):
        for j in range(3):
            v = vals(j)
            if step == 0: I(f"v_max3_f32 v{M[j]}, v{v[0]}, v{v[1]}, v{v[2]}")
            elif step < 11: I(f"v_max3_f32 v{M[j]}, v{M[j]}, v{v[2*step+1]}, v{v[2*step+2]}")
            else: I(f"v_max_f32 v{M[j]}, v{M[j]}, v{v[23]}")
    for sw in ("v_permlane16_swap_b32", "v_permlane32_swap_b32"):
        for j in range(3): I(f"v_mov_b32 v{Tm[j]}, v{M[j]}")
        for j in range(3): I(f"{sw} v{M[j]}, v{Tm[j]}")
        for j in range(3): I(f"v_max_f32 v{M[j]}, v{M[j]}, v{Tm[j]}")
    for j in range(3): I(f"v_mul_f32 v{M[j]}, s7, v{M[j]}")
    for k in range(24):
        for j in range(3):
            v = vals(j)[k]; I(f"v_fma_f32 v{v}, v{v}, s7, -v{M[j]}")
        for j in range(3):
            v = vals(j)[k]; I(f"v_exp_f32 v{v}, v{v}")
        if k >= 1:
            for j in range(3):
                v = vals(j)
                if k == 1: pass
                elif k == 2: I(f"v_add_f32 v{L[j]}, v{v[0]}, v{v[1]}")
                else: I(f"v_add_f32 v{L[j]}, v{L[j]}, v{v[k-1]}")
    for j in range(3): I(f"v_add_f32 v{L[j]}, v{L[j]}, v{vals(j)[23]}")
    for sw in ("v_permlane16_swap_b32", "v_permlane32_swap_b32"):
        for j in range(3): I(f"v_mov_b32 v{Tm[j]}, v{L[j]}")
        for j in range(3): I(f"{sw} v{L[j]}, v{Tm[j]}")
        for j in range(3): I(f"v_add_f32 v{L[j]}, v{L[j]}, v{Tm[j]}")
    for j in range(3): I(f"v_rcp_f32 v{L[j]}, v{L[j]}")
    for kt in range(6):
        for j in range(3):
            a = sacc(kt, j)
            for r in range(4): I(f"v_mul_f32 v{a+r}, v{a+r}, v{L[j]}")
            d = pp(kt >> 1, j) + (kt & 1) * 2
            I(f"v_cvt_pk_bf16_f32 v{d}, v{a}, v{a+1}"); I(f"v_cvt_pk_bf16_f32 v{d+1}, v{a+2}, v{a+3}")
    if o.dump == 'p':
        dump_regs(b, PP, 36)
    trbase(b, 1, 7)
    I("s_mul_i32 s4, s68, 49152"); I(f"s_add_u32 s4, s4, {R}")
    I("v_add_u32 v1, s4, v1")
    for j in (1, 2, 3): I(f"v_xor_b32 v{1+j}, {j<<5}, v1")
    st.mark()
    I("s_barrier")
    st.mark()
    VBUF = 8; NVB = 8; OACC = 136; OP = 40
    oacc = lambda t, j: OACC + ((t % 6) * 3 + j) * 4
    op = lambda kap, j: OP + (kap * 3 + j) * 4
    frs = [(t, U) for t in range(16) for U in range(3)]
    def vrd(n):
        t, U = frs[n]; dq = t >> 2; j = t & 3; buf = VBUF + (n % NVB) * 4
        I(f"ds_read_b64_tr_b16 {vr(buf,2)}, v{1+j} offset:{(dq*12+4*U)*1024}")
        return I(f"ds_read_b64_tr_b16 {vr(buf+2,2)}, v{1+j} offset:{(dq*12+4*U+2)*1024}")
    def ocvt(t):
        L_ = []
        for j in range(3):
            a = oacc(t, j); d = op(t >> 1, j) + (t & 1) * 2
            L_.append(f"v_cvt_pk_bf16_f32 v{d}, v{a}, v{a+1}"); L_.append(f"v_cvt_pk_bf16_f32 v{d+1}, v{a+2}, v{a+3}")
        return L_
    LA = 4
    tok = {}
    for n in range(LA): tok[n] = vrd(n)
    pend = []
    for n, (t, U) in enumerate(frs):
        b.wait_lgk(tok[n])
        buf = VBUF + (n % NVB) * 4
        for j in range(3):
            a = oacc(t, j)
            I(f"{MF} {vr(a)}, {vr(buf)}, {vr(pp(U,j))}, {'0' if U == 0 else vr(a)}")
            if j == 0 and n + LA < len(frs): tok[n + LA] = vrd(n + LA)
            if j >= 1 and U >= 1:
                for _ in range(2 if j == 1 else 1):
                    if pend: I(pend.pop(0))
        if U == 2: pend += ocvt(t)
    for x in pend: I(x)
    b.drain_lgk()
    I("v_lshlrev_b32 v5, 4, v0")
    I("s_mul_i32 s4, s68, 49152"); I("s_mul_i32 s5, s69, 3072"); I("s_add_u32 s4, s4, s5"); I(f"s_add_u32 s4, s4, {R}")
    I("v_add_u32 v5, s4, v5")
    st.mark()
    I("s_barrier")
    zs = list(range(136, 256))
    for kap in range(8):
        for j in range(3):
            I(f"ds_write_b128 v5, {vr(op(kap,j))} offset:{kap*6144+j*1024}")
            for _ in range(5):
                if zs: I(f"v_mov_b32 v{zs.pop(0)}, 0")
    trbase(b, 6, 7)
    I("s_lshl_b32 s4, s3, 12")
    I("v_add_u32 v1, s4, v6")
    for j in (1, 2, 3): I(f"v_xor_b32 v{1+j}, {j<<5}, v1")
    for m in range(3):
        I("s_mul_i32 s4, s3, 3"); I(f"s_add_u32 s4, s4, {m}")
        I("s_and_b32 s5, s4, 3"); I("s_lshl_b32 s5, s5, 5")
        I("s_lshr_b32 s4, s4, 2"); I("s_lshl_b32 s4, s4, 12")
        I(f"v_xor_b32 v{36+m}, s5, v6"); I(f"v_add_u32 v{36+m}, s4, v{36+m}")
    b.drain_lgk()
    I("v_lshlrev_b32 v5, 4, v0"); I(f"v_add_u32 v5, {R}, v5")
    for r in list(range(88, 136)) + list(range(8, 36)) + list(range(64, 88)): I(f"v_mov_b32 v{r}, 0")
    I("s_mov_b32 s6, 0")
    st.mark()
    A4 = 8; B4 = 40; ACC4 = 88
    acc4 = lambda m, q: ACC4 + (m * 6 + q) * 4
    def p4_stage(i, carried_only=False):
        u = i & 1; kp = i >> 1
        pkp = ((i - 1) & 3) >> 1
        carried = (5, 6) if u == 0 else (2, 3)
        ckp = pkp
        mine = (0, 1) if u == 0 else (4,)
        allf = (0, 1, 2, 3) if u == 0 else (4, 5, 6)
        mf = []
        for f in carried:
            for q in range(6):
                a = acc4(f, q)
                mf.append((f"{MF} {vr(a)}, {vr(A4+4*f)}, {vr(B4+24*ckp+4*q)}, {vr(a)}", []))
        if carried_only:
            for t, _ in mf: I(t)
            return
        for f in mine:
            for q in range(6):
                a = acc4(f, q)
                mf.append((f"{MF} {vr(a)}, {vr(A4+4*f)}, {vr(B4+24*kp+4*q)}, {vr(a)}", [('A', f), ('B', q)]))
        rd = []
        def rdA(f):
            areg = 1 + f if f < 4 else 36 + f - 4
            for e in range(2):
                rd.append((('A', f), f"ds_read_b64_tr_b16 {vr(A4+4*f+2*e,2)}, v{areg} offset:{i*16384+e*2048}", 0))
        rdA(allf[0])
        if u == 0:
            for q in range(6):
                rd.append((('B', q), f"ds_read_b128 {vr(B4+24*kp+4*q)}, v5 offset:{kp*6144+q*1024}", 0))
        for f in allf[1:]: rdA(f)
        I("s_barrier")
        run_sched(b, mf, rd, 2, lambda idx: 1)
        b.drain_lgk()
    b.loop_begin("L_p4")
    for i in range(4):
        p4_stage(i)
        if i == 2: I("v_add_u32 v5, 12288, v5")
    I("s_add_u32 s6, s6, 1"); I("s_cmp_lt_u32 s6, 8")
    b.loop_end("s_cbranch_scc1 L_p4")
    p4_stage(0, carried_only=True)
    st.mark()
    I("v_lshlrev_b32 v5, 4, v0")
    I("s_lshl_b32 s4, s38, 4"); I("s_add_u32 s4, s4, s40"); I("s_lshl_b32 s4, s4, 3"); I("s_add_u32 s4, s4, s39")
    I(f"s_mul_i32 s4, s4, {PART}")
    I(f"s_mul_i32 s5, s3, {4*3072}"); I("s_add_u32 s5, s5, s4")
    I(f"s_mul_i32 s7, s3, {3*3072}"); I("s_add_u32 s7, s7, s4"); I(f"s_add_u32 s7, s7, {16*3072}")
    k = 0
    for m in range(7):
        if m == 4: I("s_mov_b32 s5, s7")
        for jp in range(3):
            d = 40 + (k % 12) * 4; k += 1
            a0 = acc4(m, 2 * jp); a1 = acc4(m, 2 * jp + 1)
            I(f"v_cvt_pk_bf16_f32 v{d}, v{a0}, v{a0+1}"); I(f"v_cvt_pk_bf16_f32 v{d+1}, v{a0+2}, v{a0+3}")
            I(f"v_cvt_pk_bf16_f32 v{d+2}, v{a1}, v{a1+1}"); I(f"v_cvt_pk_bf16_f32 v{d+3}, v{a1+2}, v{a1+3}")
            if k == 13: I("s_waitcnt vmcnt(6)")
            I(f"buffer_store_dwordx4 {vr(d)}, v5, {SWS}, s5 offen offset:{jp*1024} {o.stflags}")
        I("s_add_u32 s5, s5, 3072")
    if o.stamp:
        I("s_waitcnt vmcnt(0)")
    st.mark()
    st.dump()
    I("s_endpgm")

def dump_regs(b, base, n):
    I = b.I
    I("s_lshl_b32 s4, s2, 2"); I("s_add_u32 s4, s4, s3"); I(f"s_mul_i32 s4, s4, {n*256}"); I(f"s_add_u32 s4, s4, {40<<20}")
    I("v_lshlrev_b32 v7, 2, v0")
    for r in range(n):
        I(f"buffer_store_dword v{base+r}, v7, {SWS}, s4 offen")
        I("s_add_u32 s4, s4, 256")
    I("s_waitcnt vmcnt(0)")

import struct
def f32bits(x): return struct.unpack("<I", struct.pack("<f", x))[0]

def src_pattern(b, dst, tmp, tmp2, pitch, kind):
    I = b.I
    if kind == 'wq':
        I(f"v_bfe_u32 v{tmp}, v0, 3, 2"); I(f"v_bfe_u32 v{tmp2}, v0, 5, 1"); I(f"v_lshl_or_b32 v{tmp}, v{tmp2}, 3, v{tmp}")
    else:
        I(f"v_lshrrev_b32 v{tmp}, 3, v0")
    I(f"v_mul_u32_u24 v{dst}, {pitch}, v{tmp}")
    if kind == 'k':
        I(f"v_bfe_u32 v{tmp}, v0, 4, 1"); I(f"v_bfe_u32 v{tmp2}, v0, 5, 1"); I(f"v_lshl_or_b32 v{tmp}, v{tmp2}, 2, v{tmp}")
    else:
        I(f"v_bfe_u32 v{tmp}, v0, 4, 2"); I(f"v_lshlrev_b32 v{tmp}, 1, v{tmp}")
    I(f"v_and_b32 v{tmp2}, 7, v0"); I(f"v_xor_b32 v{tmp}, v{tmp}, v{tmp2}")
    I(f"v_lshl_add_u32 v{dst}, v{tmp}, 4, v{dst}")

def ring_loader(b, o):
    I = b.I; st = Stamps(b, o)
    b.raw("@fence"); b.label("L_RL")
    I("s_sub_u32 s68, s3, 4")
    src_pattern(b, 1, 10, 11, 8192, 'wq')
    for i, ro in enumerate((0, 16, 4, 20)):
        if i: I(f"v_add_u32 v{1+i}, {ro*8192 - i*1024}, v1")
    src_pattern(b, 5, 10, 11, 896, 'w')
    for i in (1, 2, 3): I(f"v_add_u32 v{5+i}, {i*6144}, v5")
    I("s_lshl_b32 s4, s39, 10"); I("s_lshl_b32 s5, s68, 9"); I("s_add_u32 s4, s4, s5")
    I("s_lshl_b32 s8, s68, 13")
    I("s_mul_i32 s9, s40, 86016"); I(f"s_mul_i32 s5, s68, {6*7168}"); I("s_add_u32 s9, s9, s5")
    I("s_mul_i32 s10, s68, 6144"); I(f"s_add_u32 s10, s10, {XBUF}")
    I("s_mov_b32 s11, 12288")
    I(f"s_mul_i32 s12, s39, {512*896}")
    I("s_lshl_b32 s13, s68, 8")
    I(f"s_mul_i32 s15, s68, {2*8*896}")
    I("s_lshl_b32 s16, s68, 11")
    q = []
    def G_wq(slot, u, adv):
        for sg in range(2):
            I(f"s_add_u32 m0, s8, {slot*16384 + sg*4096}")
            I(f"s_add_u32 s5, s4, {u*256 + sg*128}")
            for i in range(4):
                I(f"buffer_load_dwordx4 v{1+i}, {SWQ}, s5 offen offset:{i*1024} lds")
        if adv: I(f"s_add_u32 s4, s4, {32*8192}")
        q.append(8)
    def X():
        I("s_mov_b32 m0, s10")
        for i in range(4): I(f"buffer_load_dwordx4 v{5+i}, {SX}, s9 offen offset:{i*1024} lds")
        I("s_add_u32 m0, s10, 4096"); I(f"s_add_u32 s5, s9, {4*7168}")
        for i in range(2): I(f"buffer_load_dwordx4 v{5+i}, {SX}, s5 offen offset:{i*1024} lds")
        I("s_add_u32 s9, s9, 128"); I("s_add_u32 s10, s10, s11"); I("s_sub_u32 s11, 0, s11")
    def G_wo(slot, u):
        if u == 0:
            for sg in range(2):
                I(f"s_add_u32 m0, s8, {slot*16384 + sg*4096}")
                I("s_add_u32 s5, s12, s13")
                if sg: I("s_add_u32 s5, s5, 128")
                for i in range(4):
                    I(f"buffer_load_dwordx4 v{5+i}, {SWO}, s5 offen offset:{i*1024} lds")
        else:
            I(f"s_add_u32 m0, s8, {slot*16384}")
            I("s_add_u32 s5, s12, s13"); I("s_add_u32 s5, s5, 512")
            for i in range(4):
                I(f"buffer_load_dwordx4 v{5+i}, {SWO}, s5 offen offset:{i*1024} lds")
            I(f"s_add_u32 m0, s16, {slot*16384 + 4096}")
            I("s_add_u32 s5, s12, s15"); I(f"s_add_u32 s5, s5, {512+128}")
            for i in range(2):
                I(f"buffer_load_dwordx4 v{5+i}, {SWO}, s5 offen offset:{i*1024} lds")
            I(f"s_add_u32 s12, s12, {32*896}")
    st.mark()
    X(); G_wq(0, 0, False); G_wq(1, 1, True); G_wq(2, 0, False)
    I("s_mov_b32 s6, 0")
    b.loop_begin("L_rl1")
    I("s_waitcnt vmcnt(16)"); I("s_barrier"); X(); G_wq(3, 1, True)
    I("s_waitcnt vmcnt(22)"); I("s_barrier"); G_wq(0, 0, False)
    I("s_waitcnt vmcnt(22)"); I("s_barrier"); G_wq(1, 1, True)
    I("s_waitcnt vmcnt(16)"); I("s_barrier"); G_wq(2, 0, False)
    I("s_add_u32 s6, s6, 1"); I("s_cmp_lt_u32 s6, 6")
    b.loop_end("s_cbranch_scc1 L_rl1")
    I("s_waitcnt vmcnt(16)"); I("s_barrier"); G_wq(3, 1, True)
    I("s_waitcnt vmcnt(16)"); I("s_barrier"); G_wo(0, 0)
    I("s_waitcnt vmcnt(16)"); I("s_barrier"); G_wo(1, 1)
    I("s_waitcnt vmcnt(14)"); I("s_barrier"); G_wo(2, 0)
    st.mark()
    I("s_barrier"); G_wo(3, 1)
    I("s_barrier")
    I("s_barrier")
    I("s_barrier")
    I("s_barrier")
    st.mark()
    I("s_waitcnt vmcnt(20)"); I("s_barrier")
    I("s_mov_b32 s6, 0")
    b.loop_begin("L_rl4")
    I("s_waitcnt vmcnt(14)"); I("s_barrier"); G_wo(0, 0)
    I("s_waitcnt vmcnt(14)"); I("s_barrier"); G_wo(1, 1)
    I("s_waitcnt vmcnt(14)"); I("s_barrier"); G_wo(2, 0)
    I("s_waitcnt vmcnt(14)"); I("s_barrier"); G_wo(3, 1)
    I("s_add_u32 s6, s6, 1"); I("s_cmp_lt_u32 s6, 7")
    b.loop_end("s_cbranch_scc1 L_rl4")
    I("s_waitcnt vmcnt(14)"); I("s_barrier")
    I("s_waitcnt vmcnt(6)"); I("s_barrier")
    I("s_waitcnt vmcnt(0)"); I("s_barrier")
    st.mark()
    st.dump()
    I("s_endpgm")

def kv_loader(b, o):
    I = b.I; st = Stamps(b, o)
    b.raw("@fence"); b.label("L_KL")
    I("s_sub_u32 s68, s3, 6")
    src_pattern(b, 1, 10, 11, 512, 'k')
    for i in (1, 2, 3): I(f"v_add_u32 v{1+i}, {i*3072}, v1")
    src_pattern(b, 5, 10, 11, 512, 'w')
    I("s_lshl_b32 s4, s40, 4"); I("s_lshl_b32 s5, s39, 1"); I("s_add_u32 s4, s4, s5"); I("s_add_u32 s4, s4, s68")
    I("s_mul_i32 s4, s4, 49152")
    if o.kvsame: I("s_mul_i32 s4, s68, 49152")
    I("s_mul_i32 s8, s68, 12288"); I(f"s_add_u32 s8, s8, {R}")
    KD = 16; VR = 64
    nt = " nt" if o.kvnt else ""
    loads = []
    for kg in range(3):
        for dq in range(3):
            for i in range(4):
                pre = []
                if i == 0:
                    pre = [f"s_add_u32 m0, s8, {(dq+1)*24576 + kg*4096}", f"s_add_u32 s5, s4, {kg*16384 + dq*128}"]
                loads.append(pre + [f"buffer_load_dwordx4 v{1+i}, {SK}, s5 offen offset:{i*1024}{nt} lds"])
        for i in range(4):
            ko = kg * 4 + i
            loads.append([f"s_add_u32 s7, s4, {ko*4096}", f"buffer_load_dwordx4 {vr(KD+4*ko)}, v1, {SK}, s7 offen offset:384{nt}"])
    for ko in range(12):
        for dq in range(4):
            pre = [f"s_add_u32 s7, s4, {ko*4096}"] if dq == 0 else []
            loads.append(pre + [f"buffer_load_dwordx4 {vr(VR+4*(dq*12+ko))}, v5, {SV}, s7 offen offset:{dq*128}{nt}"])
    li = 0
    def issue(n):
        nonlocal li
        for _ in range(n):
            if li < len(loads):
                for t in loads[li]: I(t)
                li += 1
    st.mark()
    if o.warm:
        warmup(b, o)
    issue(o.kpre)
    for n in range(28):
        I("s_barrier")
        issue(o.kfirst if n == 0 else o.kper)
    st.mark()
    issue(len(loads))
    assert li == len(loads), li
    I("v_lshlrev_b32 v6, 4, v0"); I("v_add_u32 v7, s8, v6")
    I("s_mul_i32 s5, s68, 49152"); I(f"s_add_u32 s5, s5, {R}"); I("v_add_u32 v8, s5, v6")
    I("s_waitcnt vmcnt(48)")
    st.mark()
    I("s_barrier")
    for ko in range(12): I(f"ds_write_b128 v7, {vr(KD+4*ko)} offset:{ko*1024}")
    b.drain_lgk()
    I("s_barrier")
    I("s_barrier")
    st.mark()
    for ko in range(12):
        I(f"s_waitcnt vmcnt({44-4*ko})")
        for dq in range(4):
            I(f"ds_write_b128 v8, {vr(VR+4*(dq*12+ko))} offset:{(dq*12+ko)*1024}")
    b.drain_lgk()
    st.mark()
    I("s_barrier")
    st.dump()
    I("s_endpgm")

def warmup(b, o):
    I = b.I
    I("v_lshlrev_b32 v9, 7, v0")
    I("s_lshl_b32 s5, s43, 1"); I("s_add_u32 s5, s5, s68"); I(f"s_mul_i32 s5, s5, {168*128}")
    I("s_mul_i32 s7, s40, 86016"); I("s_add_u32 s5, s5, s7")
    for i in range(3):
        I(f"buffer_load_dword v{12}, v9, {SX}, s5 offen")
        I("s_add_u32 s5, s5, 8192")
    I("v_lshrrev_b32 v13, 3, v0"); I("v_lshlrev_b32 v13, 13, v13"); I("v_and_b32 v14, 7, v0"); I("v_lshl_or_b32 v13, v14, 7, v13")
    I("s_mul_i32 s5, s40, 28"); I("s_mul_i32 s7, s68, 14"); I("s_add_u32 s5, s5, s7"); I("s_lshl_b32 s5, s5, 13")
    I("s_lshl_b32 s7, s39, 10"); I("s_add_u32 s5, s5, s7")
    for i in range(2):
        I(f"buffer_load_dword v{12}, v13, {SWQ}, s5 offen")
        I("s_add_u32 s5, s5, 65536")
    I(f"s_mul_i32 s5, s39, {512*896}"); I("s_mul_i32 s7, s40, 28672"); I("s_add_u32 s5, s5, s7")
    I("s_mul_i32 s7, s68, 14336"); I("s_add_u32 s5, s5, s7")
    for i in range(2):
        I(f"buffer_load_dword v{12}, v9, {SWO}, s5 offen")
        I("s_add_u32 s5, s5, 8192")

def reduce_kernel(b, o):
    I = b.I
    b.raw("@fence")
    b.raw(".p2align 8"); b.raw(".type red_kernel,@function"); b.label("red_kernel")
    I("s_cmp_ge_u32 s2, 336"); I("s_cbranch_scc1 L_rend")
    if o.stamp: I("s_memrealtime s[24:25]")
    I("s_load_dwordx2 s[4:5], s[0:1], 80")
    I("s_load_dwordx2 s[8:9], s[0:1], 96")
    I("v_lshrrev_b32 v1, 6, v0"); I("v_and_b32 v0, 63, v0"); I("v_readfirstlane_b32 s3, v1")
    I("s_lshl_b32 s12, s2, 2"); I("s_add_u32 s12, s12, s3")
    I(f"s_mov_b32 s13, {(2**32 + 13)//14 + 0}")
    I("s_mul_hi_u32 s14, s12, s13")
    I("s_mul_i32 s15, s14, 14"); I("s_sub_u32 s15, s12, s15")
    I(f"s_mov_b32 s13, {(2**32 + 2)//3}")
    I("s_mul_hi_u32 s16, s14, s13")
    I("s_mul_i32 s17, s16, 3"); I("s_sub_u32 s17, s14, s17")
    I("s_mov_b32 s6, 2752512"); I("s_mov_b32 s7, 0x20000")
    I(f"s_mov_b32 s10, {256*PART}"); I("s_mov_b32 s11, 0x20000")
    I(f"s_mul_i32 s18, s16, {8*PART}"); I("s_mul_i32 s19, s15, 6144"); I("s_add_u32 s18, s18, s19")
    I("s_lshl_b32 s19, s17, 10"); I("s_add_u32 s18, s18, s19")
    I("v_lshlrev_b32 v2, 4, v0")
    I("s_waitcnt lgkmcnt(0)")
    for p in range(8):
        I(f"buffer_load_dwordx4 {vr(8+8*p)}, v2, s[8:11], s18 offen {o.ldflags}")
        I(f"buffer_load_dwordx4 {vr(12+8*p)}, v2, s[8:11], s18 offen offset:3072 {o.ldflags}")
        I(f"s_add_u32 s18, s18, {PART}")
    I("s_and_b32 s19, s16, 15"); I("s_mul_i32 s19, s19, 96"); I("s_lshl_b32 s20, s17, 5"); I("s_add_u32 s19, s19, s20")
    I("s_mul_i32 s19, s19, 1792")
    I("s_lshr_b32 s20, s16, 4"); I("s_mul_i32 s20, s20, 896"); I("s_add_u32 s19, s19, s20")
    I("s_lshl_b32 s20, s15, 6"); I("s_add_u32 s19, s19, s20")
    I("s_add_u32 s21, s19, 28672")
    I("v_and_b32 v3, 15, v0"); I("v_mul_u32_u24 v3, 1792, v3")
    I("v_bfe_u32 v4, v0, 5, 1"); I("v_lshl_add_u32 v3, v4, 4, v3")
    I("v_bfe_u32 v4, v0, 4, 1"); I("v_lshl_add_u32 v3, v4, 5, v3")
    I("s_mov_b32 s22, 0xffff0000")
    AC = 72
    for p in range(8):
        I(f"s_waitcnt vmcnt({14-2*p})")
        for r in range(8):
            src = 8 + 8 * p + r
            if p == 0:
                I(f"v_lshlrev_b32 v{AC+2*r}, 16, v{src}"); I(f"v_and_b32 v{AC+2*r+1}, s22, v{src}")
            else:
                I(f"v_lshlrev_b32 v5, 16, v{src}"); I(f"v_and_b32 v6, s22, v{src}")
                I(f"v_add_f32 v{AC+2*r}, v{AC+2*r}, v5"); I(f"v_add_f32 v{AC+2*r+1}, v{AC+2*r+1}, v6")
    for h in range(2):
        d = 8 + 4 * h
        for k, r in enumerate((2 * h, 2 * h + 1, 4 + 2 * h, 5 + 2 * h)):
            I(f"v_cvt_pk_bf16_f32 v{d+k}, v{AC+2*r}, v{AC+2*r+1}")
    for h in range(2):
        d = 8 + 4 * h
        I(f"v_permlane16_swap_b32 v{d}, v{d+2}"); I(f"v_permlane16_swap_b32 v{d+1}, v{d+3}")
    I("buffer_store_dwordx4 v[8:11], v3, s[4:7], s19 offen")
    I("buffer_store_dwordx4 v[12:15], v3, s[4:7], s21 offen")
    if o.stamp:
        I("s_waitcnt vmcnt(0)"); I("s_memrealtime s[26:27]"); I("s_waitcnt lgkmcnt(0)")
        I("s_mov_b32 s10, 0x4000000")
        I("s_lshl_b32 s12, s12, 3"); I(f"s_add_u32 s12, s12, {WS_STAMP + 131072}")
        I("v_mov_b32 v1, 0"); I("v_mov_b32 v2, s24"); I("v_mov_b32 v3, s26")
        I("buffer_store_dwordx2 v[2:3], v1, s[8:11], s12 offen")
    b.label("L_rend")
    I("s_endpgm")

def kd(name, nv, ns):
    return f""".amdhsa_kernel {name}
  .amdhsa_next_free_vgpr {nv}
  .amdhsa_next_free_sgpr {ns}
  .amdhsa_accum_offset {(nv+3)//4*4}
  .amdhsa_group_segment_fixed_size 0
  .amdhsa_kernarg_size 104
  .amdhsa_user_sgpr_count 2
  .amdhsa_user_sgpr_kernarg_segment_ptr 1
  .amdhsa_system_sgpr_workgroup_id_x 1
.end_amdhsa_kernel
"""

def gen(o):
    b = Builder()
    hdr = f"""; fused attention block: K1 = Qproj+attn+Oproj partials (2 heads / WG), K2 = reduce over head pairs
; @launch kernel={NAME}_kernel grid=(256,1,1) block=(512,1,1) lds=163840
; @launch kernel=red_kernel grid=(336,1,1) block=(256,1,1) lds=0
.amdgcn_target "amdgcn-amd-amdhsa--gfx950"
.text
.globl {NAME}_kernel
.p2align 8
.type {NAME}_kernel,@function
"""
    b.label(f"{NAME}_kernel")
    prologue(b, o)
    compute(b, o)
    ring_loader(b, o)
    kv_loader(b, o)
    b.label("L_end"); b.I("s_endpgm")
    reduce_kernel(b, o)
    tail = '.section .rodata,"a"\n.p2align 6\n' + kd(f"{NAME}_kernel", 256, 100) + ".p2align 6\n" + kd("red_kernel", 88, 32)
    return hdr + b.text() + tail

if __name__ == "__main__":
    ap = argparse.ArgumentParser()
    ap.add_argument("-o", default="cdna_kernels/" + NAME + ".s")
    ap.add_argument("--stamp", action="store_true")
    ap.add_argument("--dump", default="")
    ap.add_argument("--kvnt", type=int, default=0)
    ap.add_argument("--warm", type=int, default=1)
    ap.add_argument("--kpre", type=int, default=0)
    ap.add_argument("--kfirst", type=int, default=24)
    ap.add_argument("--kper", type=int, default=3)
    ap.add_argument("--kvsame", type=int, default=0)
    ap.add_argument("--stflags", default="")
    ap.add_argument("--ldflags", default="")
    o = ap.parse_args()
    open(o.o, "w").write(gen(o))
```

```python
import sys, math, argparse
from asmb import Builder
NAME = "concat_heads__mha_block_cached__gqa_block_cached__near_ridge"

R = 65536; XBUF = 65536
WS_STAMP = 32 << 20
PART = 86016

class Opt: pass

def vr(a, n=4): return f"v[{a}:{a+n-1}]"

def prologue(b, o):
    I = b.I
    I("s_cmp_ge_u32 s2, 256"); I("s_cbranch_scc1 L_end")
    if o.stamp: I("s_memrealtime s[96:97]")
    I("s_load_dwordx8 s[4:11], s[0:1], 0")
    I("s_load_dwordx2 s[12:13], s[0:1], 32")
    I("s_load_dwordx8 s[16:23], s[0:1], 40")
    I("s_load_dwordx2 s[24:25], s[0:1], 72")
    I("s_load_dwordx2 s[26:27], s[0:1], 96")
    I("v_lshrrev_b32 v1, 6, v0")
    I("v_and_b32 v0, 63, v0")
    I("v_readfirstlane_b32 s3, v1")
    I("s_and_b32 s41, s2, 7")
    I("s_lshr_b32 s42, s2, 3")
    I("s_lshr_b32 s38, s41, 2")
    I("s_and_b32 s39, s41, 3"); I("s_lshl_b32 s39, s39, 1")
    I("s_and_b32 s43, s42, 1"); I("s_or_b32 s39, s39, s43")
    I("s_lshr_b32 s40, s42, 1")
    for srd, size in ((44, 1376256), (48, 12582912), (52, 12582912), (56, 3670016), (60, 3670016), (64, 64 << 20)):
        I(f"s_mov_b32 s{srd+2}, {size}"); I(f"s_mov_b32 s{srd+3}, 0x20000")
    I("s_waitcnt lgkmcnt(0)")
    I("s_cmp_eq_u32 s38, 0")
    for srd, a, bb in ((44, 4, 16), (48, 6, 18), (52, 8, 20), (56, 10, 22), (60, 12, 24)):
        I(f"s_cselect_b32 s{srd}, s{a}, s{bb}"); I(f"s_cselect_b32 s{srd+1}, s{a+1}, s{bb+1}")
    I("s_mov_b32 s64, s26"); I("s_mov_b32 s65, s27")
    I("s_cmp_ge_u32 s3, 6"); I("s_cbranch_scc1 L_KL")
    I("s_cmp_ge_u32 s3, 4"); I("s_cbranch_scc1 L_RL")

SX, SK, SV, SWQ, SWO, SWS = "s[44:47]", "s[48:51]", "s[52:55]", "s[56:59]", "s[60:63]", "s[64:67]"

class Stamps:
    def __init__(self, b, o): self.b = b; self.o = o; self.n = 0
    def mark(self):
        if not self.o.stamp: return
        assert self.n < 13
        self.b.I(f"s_memtime s[{70+2*self.n}:{71+2*self.n}]")
        self.b.drain_lgk(force=True)
        self.n += 1
    def dump(self, dbg=False):
        if not self.o.stamp: return
        I = self.b.I
        I("s_memrealtime s[98:99]")
        I("s_waitcnt lgkmcnt(0)")
        I("s_lshl_b32 s4, s2, 3"); I("s_add_u32 s4, s4, s3"); I("s_lshl_b32 s4, s4, 6"); I(f"s_add_u32 s4, s4, {WS_STAMP}")
        I("v_mov_b32 v1, 0")
        for k in range(self.n):
            I(f"v_mov_b32 v2, s{70+2*k}")
            I(f"buffer_store_dword v2, v1, {SWS}, s4 offen offset:{4*k}")
        I("v_mov_b32 v2, s96"); I(f"buffer_store_dword v2, v1, {SWS}, s4 offen offset:56")
        I("v_mov_b32 v2, s98"); I(f"buffer_store_dword v2, v1, {SWS}, s4 offen offset:60")
        if self.o.dbg and dbg:
            I("s_load_dwordx2 s[8:9], s[0:1], 88"); I("s_mov_b32 s10, 256"); I("s_mov_b32 s11, 0x20000")
            I("s_waitcnt lgkmcnt(0)")
            I("s_lshl_b32 s4, s2, 3"); I("s_add_u32 s4, s4, s3"); I("s_cmp_lg_u32 s4, 0"); I("s_cbranch_scc1 L_nodbg")
            for k in range(1, self.n):
                I(f"s_sub_u32 s5, s{70+2*k}, s{68+2*k}"); I("v_mov_b32 v2, s5")
                I(f"buffer_store_dword v2, v1, s[8:11], 0 offen offset:{4*(k-1)}")
            I("v_mov_b32 v2, s96"); I(f"buffer_store_dword v2, v1, s[8:11], 0 offen offset:40")
            self.b.label("L_nodbg")
            I("v_mov_b32 v2, s98"); I(f"buffer_atomic_umax v2, v1, s[8:11], 0 offen offset:44")

def interleave(b, mfmas, reads, first=2, per=1, pre=None):
    pass

def trbase(b, dst, tmp):
    I = b.I
    I(f"v_lshrrev_b32 v{dst}, 5, v0"); I(f"v_lshlrev_b32 v{dst}, 10, v{dst}")
    I(f"v_bfe_u32 v{tmp}, v0, 2, 3"); I(f"v_lshl_or_b32 v{dst}, v{tmp}, 7, v{dst}")
    I(f"v_bfe_u32 v{tmp}, v0, 3, 2"); I(f"v_lshl_or_b32 v{dst}, v{tmp}, 5, v{dst}")
    I(f"v_and_b32 v{tmp}, 3, v0"); I(f"v_lshl_or_b32 v{dst}, v{tmp}, 3, v{dst}")

def run_sched(b, mf, rd, first, per_gap):
    tok = {}
    ri = 0
    def emit_reads(n, idx):
        nonlocal ri
        k = 0
        while k < n and ri < len(rd) and rd[ri][2] <= idx:
            key, text, _ = rd[ri]
            tok[key] = b.I(text); ri += 1; k += 1
    emit_reads(first, 0)
    for i, (text, need) in enumerate(mf):
        for key in need:
            if key in tok: b.wait_lgk(tok[key])
            else:
                assert key is None or key not in [r[0] for r in rd], f"mfma {i} needs read {key} not yet issued"
        b.I(text)
        emit_reads(per_gap(i), i + 1)
    assert ri == len(rd), f"unissued reads {len(rd)-ri}"

MF = "v_mfma_f32_16x16x32_bf16"

def compute(b, o):
    I = b.I; st = Stamps(b, o)
    I("s_lshr_b32 s68, s3, 1"); I("s_and_b32 s69, s3, 1")
    ABUF = 8; BBUF = 40; QACC = 64
    qacc = lambda t, j: QACC + (t * 3 + j) * 4
    trbase(b, 1, 7)
    I("s_lshl_b32 s4, s68, 13")
    I("v_add_u32 v1, s4, v1")
    for j in (1, 2, 3): I(f"v_xor_b32 v{1+j}, {j<<5}, v1")
    I("v_bfe_u32 v5, v0, 3, 1"); I("v_lshlrev_b32 v5, 10, v5")
    I("v_and_b32 v7, 7, v0"); I("v_lshl_or_b32 v5, v7, 7, v5")
    I("v_lshrrev_b32 v7, 5, v0"); I("v_bfe_u32 v6, v0, 1, 2"); I("v_xor_b32 v7, v7, v6"); I("v_lshl_or_b32 v5, v7, 5, v5")
    I("v_bfe_u32 v7, v0, 4, 1"); I("v_lshl_or_b32 v5, v7, 4, v5")
    I("s_mul_i32 s4, s69, 6144"); I(f"s_add_u32 s4, s4, {XBUF}")
    I("v_add_u32 v5, s4, v5"); I("v_xor_b32 v6, 64, v5")
    for r in range(8, 256): I(f"v_mov_b32 v{r}, 0")
    I("s_mov_b32 s5, 12288")
    I("s_mov_b32 s6, 0")
    st.mark()
    def p1_stage(i, carried_only=False):
        u = i & 1; kp = i >> 1
        pu = (i - 1) & 1; pkp = ((i - 1) & 3) >> 1
        mf = []
        for f in (5, 6, 7):
            for j in range(3):
                a = qacc(8 * pu + f, j)
                mf.append((f"{MF} {vr(a)}, {vr(ABUF+4*f)}, {vr(BBUF+12*pkp+4*j)}, {vr(a)}", []))
        if carried_only:
            for t, _ in mf: I(t)
            return
        for f in range(5):
            for j in range(3):
                a = qacc(8 * u + f, j)
                mf.append((f"{MF} {vr(a)}, {vr(ABUF+4*f)}, {vr(BBUF+12*kp+4*j)}, {vr(a)}", [('A', f), ('B', j)]))
        rd = []
        def rdA(f):
            sg = f >> 2; j = f & 3
            mi = {5: 3, 6: 6, 7: 9}.get(f, 0)
            for e in range(2):
                rd.append((('A', f), f"ds_read_b64_tr_b16 {vr(ABUF+4*f+2*e,2)}, v{1+j} offset:{i*16384+sg*4096+e*2048}", mi))
        rdA(0)
        if u == 0:
            for j in range(3):
                rd.append((('B', j), f"ds_read_b128 {vr(BBUF+12*kp+4*j)}, v{5+kp} offset:{j*2048}", 0))
        for f in range(1, 8): rdA(f)
        I("s_barrier")
        run_sched(b, mf, rd, 2, lambda idx: (2 if idx % 3 == 0 else 1))
        b.drain_lgk()
    b.loop_begin("L_p1")
    for i in range(4):
        p1_stage(i)
        if i == 2:
            I("v_add_u32 v5, s5, v5"); I("v_add_u32 v6, s5, v6"); I("s_sub_u32 s5, 0, s5")
    I("s_add_u32 s6, s6, 1"); I("s_cmp_lt_u32 s6, 7")
    b.loop_end("s_cbranch_scc1 L_p1")
    I("s_barrier")
    p1_stage(0, carried_only=True)
    st.mark()
    QP = 40
    qp = lambda T, j: QP + (T * 3 + j) * 4
    for T in range(8):
        for j in range(3):
            d = qp(T, j); a0 = qacc(2 * T, j); a1 = qacc(2 * T + 1, j)
            I(f"v_cvt_pk_bf16_f32 v{d}, v{a0}, v{a0+1}"); I(f"v_cvt_pk_bf16_f32 v{d+1}, v{a0+2}, v{a0+3}")
            I(f"v_cvt_pk_bf16_f32 v{d+2}, v{a1}, v{a1+1}"); I(f"v_cvt_pk_bf16_f32 v{d+3}, v{a1+2}, v{a1+3}")
        for j in range(3):
            d = qp(T, j)
            I(f"v_permlane16_swap_b32 v{d}, v{d+2}"); I(f"v_permlane16_swap_b32 v{d+1}, v{d+3}")
    if o.dump == 'q':
        dump_regs(b, QP, 96)
    I("v_bfe_u32 v1, v0, 3, 1"); I("v_lshlrev_b32 v1, 10, v1")
    I("v_and_b32 v7, 7, v0"); I("v_lshl_or_b32 v1, v7, 7, v1")
    I("v_bfe_u32 v7, v0, 5, 1"); I("v_bfe_u32 v6, v0, 1, 1"); I("v_xor_b32 v7, v7, v6"); I("v_lshl_or_b32 v1, v7, 4, v1")
    I("v_bfe_u32 v7, v0, 4, 1"); I("v_lshl_or_b32 v1, v7, 5, v1")
    I("v_bfe_u32 v7, v0, 2, 1"); I("v_lshl_or_b32 v1, v7, 6, v1")
    I("s_mul_i32 s4, s68, 12288"); I(f"s_add_u32 s4, s4, {R}")
    I("v_add_u32 v1, s4, v1"); I("v_xor_b32 v2, 64, v1")
    I("v_add_u32 v3, 49152, v1"); I("v_add_u32 v4, 49152, v2")
    st.mark()
    SACC = 136; KBUF = 208
    sacc = lambda kt, j: SACC + (kt * 3 + j) * 4
    def krd(T, kt):
        dq = T >> 1; pos = (dq + 1) & 3
        off = pos * 24576 + kt * 2048
        reg = 1 + (T & 1)
        if off >= 49152: off -= 49152; reg += 2
        buf = KBUF + ((T & 1) * 6 + kt) * 4
        return f"ds_read_b128 {vr(buf)}, v{reg} offset:{off}"
    tok = {}
    for kt in range(6): tok[(0, kt)] = I(krd(0, kt))
    for T in range(8):
        if T == 4: I("s_barrier")
        for kt in range(6):
            b.wait_lgk(tok[(T, kt)])
            buf = KBUF + ((T & 1) * 6 + kt) * 4
            for j in range(3):
                a = sacc(kt, j)
                I(f"{MF} {vr(a)}, {vr(buf)}, {vr(qp(T,j))}, {'0' if T == 0 else vr(a)}")
                if j == 0 and T < 7: tok[(T + 1, kt)] = I(krd(T + 1, kt))
    b.drain_lgk()
    I("s_barrier")
    st.mark()
    PP = 208
    pp = lambda U, j: PP + (U * 3 + j) * 4
    I(f"s_mov_b32 s7, {hex(f32bits(math.log2(math.e) / 16.0))}")
    M = [8, 9, 10]; Tm = [11, 12, 13]; L = [14, 15, 16]
    vals = lambda j: [sacc(kt, j) + r for kt in range(6) for r in range(4)]
    for step in range(12):
        for j in range(3):
            v = vals(j)
            if step == 0: I(f"v_max3_f32 v{M[j]}, v{v[0]}, v{v[1]}, v{v[2]}")
            elif step < 11: I(f"v_max3_f32 v{M[j]}, v{M[j]}, v{v[2*step+1]}, v{v[2*step+2]}")
            else: I(f"v_max_f32 v{M[j]}, v{M[j]}, v{v[23]}")
    for sw in ("v_permlane16_swap_b32", "v_permlane32_swap_b32"):
        for j in range(3): I(f"v_mov_b32 v{Tm[j]}, v{M[j]}")
        for j in range(3): I(f"{sw} v{M[j]}, v{Tm[j]}")
        for j in range(3): I(f"v_max_f32 v{M[j]}, v{M[j]}, v{Tm[j]}")
    for j in range(3): I(f"v_mul_f32 v{M[j]}, s7, v{M[j]}")
    for k in range(24):
        for j in range(3):
            v = vals(j)[k]; I(f"v_fma_f32 v{v}, v{v}, s7, -v{M[j]}")
        for j in range(3):
            v = vals(j)[k]; I(f"v_exp_f32 v{v}, v{v}")
        if k >= 1:
            for j in range(3):
                v = vals(j)
                if k == 1: pass
                elif k == 2: I(f"v_add_f32 v{L[j]}, v{v[0]}, v{v[1]}")
                else: I(f"v_add_f32 v{L[j]}, v{L[j]}, v{v[k-1]}")
    for j in range(3): I(f"v_add_f32 v{L[j]}, v{L[j]}, v{vals(j)[23]}")
    for sw in ("v_permlane16_swap_b32", "v_permlane32_swap_b32"):
        for j in range(3): I(f"v_mov_b32 v{Tm[j]}, v{L[j]}")
        for j in range(3): I(f"{sw} v{L[j]}, v{Tm[j]}")
        for j in range(3): I(f"v_add_f32 v{L[j]}, v{L[j]}, v{Tm[j]}")
    for j in range(3): I(f"v_rcp_f32 v{L[j]}, v{L[j]}")
    for kt in range(6):
        for j in range(3):
            a = sacc(kt, j)
            for r in range(4): I(f"v_mul_f32 v{a+r}, v{a+r}, v{L[j]}")
            d = pp(kt >> 1, j) + (kt & 1) * 2
            I(f"v_cvt_pk_bf16_f32 v{d}, v{a}, v{a+1}"); I(f"v_cvt_pk_bf16_f32 v{d+1}, v{a+2}, v{a+3}")
    if o.dump == 'p':
        dump_regs(b, PP, 36)
    trbase(b, 1, 7)
    I("s_mul_i32 s4, s68, 49152"); I(f"s_add_u32 s4, s4, {R}")
    I("v_add_u32 v1, s4, v1")
    for j in (1, 2, 3): I(f"v_xor_b32 v{1+j}, {j<<5}, v1")
    st.mark()
    I("s_barrier")
    st.mark()
    VBUF = 8; NVB = 8; OACC = 136; OP = 40
    oacc = lambda t, j: OACC + ((t % 6) * 3 + j) * 4
    op = lambda kap, j: OP + (kap * 3 + j) * 4
    frs = [(t, U) for t in range(16) for U in range(3)]
    def vrd(n):
        t, U = frs[n]; dq = t >> 2; j = t & 3; buf = VBUF + (n % NVB) * 4
        I(f"ds_read_b64_tr_b16 {vr(buf,2)}, v{1+j} offset:{(dq*12+4*U)*1024}")
        return I(f"ds_read_b64_tr_b16 {vr(buf+2,2)}, v{1+j} offset:{(dq*12+4*U+2)*1024}")
    def ocvt(t):
        L_ = []
        for j in range(3):
            a = oacc(t, j); d = op(t >> 1, j) + (t & 1) * 2
            L_.append(f"v_cvt_pk_bf16_f32 v{d}, v{a}, v{a+1}"); L_.append(f"v_cvt_pk_bf16_f32 v{d+1}, v{a+2}, v{a+3}")
        return L_
    LA = 4
    tok = {}
    for n in range(LA): tok[n] = vrd(n)
    pend = []
    for n, (t, U) in enumerate(frs):
        b.wait_lgk(tok[n])
        buf = VBUF + (n % NVB) * 4
        for j in range(3):
            a = oacc(t, j)
            I(f"{MF} {vr(a)}, {vr(buf)}, {vr(pp(U,j))}, {'0' if U == 0 else vr(a)}")
            if j == 0 and n + LA < len(frs): tok[n + LA] = vrd(n + LA)
            if j >= 1 and U >= 1:
                for _ in range(2 if j == 1 else 1):
                    if pend: I(pend.pop(0))
        if U == 2: pend += ocvt(t)
    for x in pend: I(x)
    b.drain_lgk()
    I("v_lshlrev_b32 v5, 4, v0")
    I("s_mul_i32 s4, s68, 49152"); I("s_mul_i32 s5, s69, 3072"); I("s_add_u32 s4, s4, s5"); I(f"s_add_u32 s4, s4, {R}")
    I("v_add_u32 v5, s4, v5")
    st.mark()
    I("s_barrier")
    zs = list(range(136, 256))
    for kap in range(8):
        for j in range(3):
            I(f"ds_write_b128 v5, {vr(op(kap,j))} offset:{kap*6144+j*1024}")
            for _ in range(5):
                if zs: I(f"v_mov_b32 v{zs.pop(0)}, 0")
    trbase(b, 6, 7)
    I("s_lshl_b32 s4, s3, 12")
    I("v_add_u32 v1, s4, v6")
    for j in (1, 2, 3): I(f"v_xor_b32 v{1+j}, {j<<5}, v1")
    for m in range(3):
        I("s_mul_i32 s4, s3, 3"); I(f"s_add_u32 s4, s4, {m}")
        I("s_and_b32 s5, s4, 3"); I("s_lshl_b32 s5, s5, 5")
        I("s_lshr_b32 s4, s4, 2"); I("s_lshl_b32 s4, s4, 12")
        I(f"v_xor_b32 v{36+m}, s5, v6"); I(f"v_add_u32 v{36+m}, s4, v{36+m}")
    b.drain_lgk()
    I("v_lshlrev_b32 v5, 4, v0"); I(f"v_add_u32 v5, {R}, v5")
    for r in list(range(88, 136)) + list(range(8, 36)) + list(range(64, 88)): I(f"v_mov_b32 v{r}, 0")
    I("s_mov_b32 s6, 0")
    st.mark()
    A4 = 8; B4 = 40; ACC4 = 88
    acc4 = lambda m, q: ACC4 + (m * 6 + q) * 4
    def p4_stage(i, carried_only=False):
        u = i & 1; kp = i >> 1
        pkp = ((i - 1) & 3) >> 1
        carried = (5, 6) if u == 0 else (2, 3)
        ckp = pkp
        mine = (0, 1) if u == 0 else (4,)
        allf = (0, 1, 2, 3) if u == 0 else (4, 5, 6)
        mf = []
        for f in carried:
            for q in range(6):
                a = acc4(f, q)
                mf.append((f"{MF} {vr(a)}, {vr(A4+4*f)}, {vr(B4+24*ckp+4*q)}, {vr(a)}", []))
        if carried_only:
            for t, _ in mf: I(t)
            return
        for f in mine:
            for q in range(6):
                a = acc4(f, q)
                mf.append((f"{MF} {vr(a)}, {vr(A4+4*f)}, {vr(B4+24*kp+4*q)}, {vr(a)}", [('A', f), ('B', q)]))
        rd = []
        def rdA(f):
            areg = 1 + f if f < 4 else 36 + f - 4
            for e in range(2):
                rd.append((('A', f), f"ds_read_b64_tr_b16 {vr(A4+4*f+2*e,2)}, v{areg} offset:{i*16384+e*2048}", 0))
        rdA(allf[0])
        if u == 0:
            for q in range(6):
                rd.append((('B', q), f"ds_read_b128 {vr(B4+24*kp+4*q)}, v5 offset:{kp*6144+q*1024}", 0))
        for f in allf[1:]: rdA(f)
        I("s_barrier")
        run_sched(b, mf, rd, 2, lambda idx: 1)
        b.drain_lgk()
    b.loop_begin("L_p4")
    for i in range(4):
        p4_stage(i)
        if i == 2: I("v_add_u32 v5, 12288, v5")
    I("s_add_u32 s6, s6, 1"); I("s_cmp_lt_u32 s6, 8")
    b.loop_end("s_cbranch_scc1 L_p4")
    p4_stage(0, carried_only=True)
    st.mark()
    I("v_lshlrev_b32 v5, 4, v0")
    I("s_lshl_b32 s4, s38, 4"); I("s_add_u32 s4, s4, s40"); I("s_lshl_b32 s4, s4, 3"); I("s_add_u32 s4, s4, s39")
    I(f"s_mul_i32 s4, s4, {PART}")
    I(f"s_mul_i32 s5, s3, {4*3072}"); I("s_add_u32 s5, s5, s4")
    I(f"s_mul_i32 s7, s3, {3*3072}"); I("s_add_u32 s7, s7, s4"); I(f"s_add_u32 s7, s7, {16*3072}")
    k = 0
    for m in range(7):
        if m == 4: I("s_mov_b32 s5, s7")
        for jp in range(3):
            d = 40 + (k % 12) * 4; k += 1
            a0 = acc4(m, 2 * jp); a1 = acc4(m, 2 * jp + 1)
            I(f"v_cvt_pk_bf16_f32 v{d}, v{a0}, v{a0+1}"); I(f"v_cvt_pk_bf16_f32 v{d+1}, v{a0+2}, v{a0+3}")
            I(f"v_cvt_pk_bf16_f32 v{d+2}, v{a1}, v{a1+1}"); I(f"v_cvt_pk_bf16_f32 v{d+3}, v{a1+2}, v{a1+3}")
            if k == 13: I("s_waitcnt vmcnt(6)")
            I(f"buffer_store_dwordx4 {vr(d)}, v5, {SWS}, s5 offen offset:{jp*1024} {o.stflags}")
        I("s_add_u32 s5, s5, 3072")
    if o.stamp:
        I("s_waitcnt vmcnt(0)")
    st.mark()
    st.dump(True)
    I("s_endpgm")

def dump_regs(b, base, n):
    I = b.I
    I("s_lshl_b32 s4, s2, 2"); I("s_add_u32 s4, s4, s3"); I(f"s_mul_i32 s4, s4, {n*256}"); I(f"s_add_u32 s4, s4, {40<<20}")
    I("v_lshlrev_b32 v7, 2, v0")
    for r in range(n):
        I(f"buffer_store_dword v{base+r}, v7, {SWS}, s4 offen")
        I("s_add_u32 s4, s4, 256")
    I("s_waitcnt vmcnt(0)")

import struct
def f32bits(x): return struct.unpack("<I", struct.pack("<f", x))[0]

def src_pattern(b, dst, tmp, tmp2, pitch, kind):
    I = b.I
    if kind == 'wq':
        I(f"v_bfe_u32 v{tmp}, v0, 3, 2"); I(f"v_bfe_u32 v{tmp2}, v0, 5, 1"); I(f"v_lshl_or_b32 v{tmp}, v{tmp2}, 3, v{tmp}")
    else:
        I(f"v_lshrrev_b32 v{tmp}, 3, v0")
    I(f"v_mul_u32_u24 v{dst}, {pitch}, v{tmp}")
    if kind == 'k':
        I(f"v_bfe_u32 v{tmp}, v0, 4, 1"); I(f"v_bfe_u32 v{tmp2}, v0, 5, 1"); I(f"v_lshl_or_b32 v{tmp}, v{tmp2}, 2, v{tmp}")
    else:
        I(f"v_bfe_u32 v{tmp}, v0, 4, 2"); I(f"v_lshlrev_b32 v{tmp}, 1, v{tmp}")
    I(f"v_and_b32 v{tmp2}, 7, v0"); I(f"v_xor_b32 v{tmp}, v{tmp}, v{tmp2}")
    I(f"v_lshl_add_u32 v{dst}, v{tmp}, 4, v{dst}")

def ring_loader(b, o):
    I = b.I; st = Stamps(b, o)
    b.raw("@fence"); b.label("L_RL")
    I("s_sub_u32 s68, s3, 4")
    src_pattern(b, 1, 10, 11, 8192, 'wq')
    for i, ro in enumerate((0, 16, 4, 20)):
        if i: I(f"v_add_u32 v{1+i}, {ro*8192 - i*1024}, v1")
    src_pattern(b, 5, 10, 11, 896, 'w')
    for i in (1, 2, 3): I(f"v_add_u32 v{5+i}, {i*6144}, v5")
    I("s_lshl_b32 s4, s39, 10"); I("s_lshl_b32 s5, s68, 9"); I("s_add_u32 s4, s4, s5")
    I("s_lshl_b32 s8, s68, 13")
    I("s_mul_i32 s9, s40, 86016"); I(f"s_mul_i32 s5, s68, {6*7168}"); I("s_add_u32 s9, s9, s5")
    I("s_mul_i32 s10, s68, 6144"); I(f"s_add_u32 s10, s10, {XBUF}")
    I("s_mov_b32 s11, 12288")
    I(f"s_mul_i32 s12, s39, {512*896}")
    I("s_lshl_b32 s13, s68, 8")
    I(f"s_mul_i32 s15, s68, {2*8*896}")
    I("s_lshl_b32 s16, s68, 11")
    q = []
    def G_wq(slot, u, adv):
        for sg in range(2):
            I(f"s_add_u32 m0, s8, {slot*16384 + sg*4096}")
            I(f"s_add_u32 s5, s4, {u*256 + sg*128}")
            for i in range(4):
                I(f"buffer_load_dwordx4 v{1+i}, {SWQ}, s5 offen offset:{i*1024} lds")
        if adv: I(f"s_add_u32 s4, s4, {32*8192}")
        q.append(8)
    def X():
        I("s_mov_b32 m0, s10")
        for i in range(4): I(f"buffer_load_dwordx4 v{5+i}, {SX}, s9 offen offset:{i*1024} lds")
        I("s_add_u32 m0, s10, 4096"); I(f"s_add_u32 s5, s9, {4*7168}")
        for i in range(2): I(f"buffer_load_dwordx4 v{5+i}, {SX}, s5 offen offset:{i*1024} lds")
        I("s_add_u32 s9, s9, 128"); I("s_add_u32 s10, s10, s11"); I("s_sub_u32 s11, 0, s11")
    def G_wo(slot, u):
        if u == 0:
            for sg in range(2):
                I(f"s_add_u32 m0, s8, {slot*16384 + sg*4096}")
                I("s_add_u32 s5, s12, s13")
                if sg: I("s_add_u32 s5, s5, 128")
                for i in range(4):
                    I(f"buffer_load_dwordx4 v{5+i}, {SWO}, s5 offen offset:{i*1024} lds")
        else:
            I(f"s_add_u32 m0, s8, {slot*16384}")
            I("s_add_u32 s5, s12, s13"); I("s_add_u32 s5, s5, 512")
            for i in range(4):
                I(f"buffer_load_dwordx4 v{5+i}, {SWO}, s5 offen offset:{i*1024} lds")
            I(f"s_add_u32 m0, s16, {slot*16384 + 4096}")
            I("s_add_u32 s5, s12, s15"); I(f"s_add_u32 s5, s5, {512+128}")
            for i in range(2):
                I(f"buffer_load_dwordx4 v{5+i}, {SWO}, s5 offen offset:{i*1024} lds")
            I(f"s_add_u32 s12, s12, {32*896}")
    st.mark()
    X(); G_wq(0, 0, False); G_wq(1, 1, True); G_wq(2, 0, False)
    I("s_mov_b32 s6, 0")
    b.loop_begin("L_rl1")
    I("s_waitcnt vmcnt(16)"); I("s_barrier"); X(); G_wq(3, 1, True)
    I("s_waitcnt vmcnt(22)"); I("s_barrier"); G_wq(0, 0, False)
    I("s_waitcnt vmcnt(22)"); I("s_barrier"); G_wq(1, 1, True)
    I("s_waitcnt vmcnt(16)"); I("s_barrier"); G_wq(2, 0, False)
    I("s_add_u32 s6, s6, 1"); I("s_cmp_lt_u32 s6, 6")
    b.loop_end("s_cbranch_scc1 L_rl1")
    I("s_waitcnt vmcnt(16)"); I("s_barrier"); G_wq(3, 1, True)
    I("s_waitcnt vmcnt(16)"); I("s_barrier"); G_wo(0, 0)
    I("s_waitcnt vmcnt(16)"); I("s_barrier"); G_wo(1, 1)
    I("s_waitcnt vmcnt(14)"); I("s_barrier"); G_wo(2, 0)
    st.mark()
    I("s_barrier"); G_wo(3, 1)
    I("s_barrier")
    I("s_barrier")
    I("s_barrier")
    I("s_barrier")
    st.mark()
    I("s_waitcnt vmcnt(20)"); I("s_barrier")
    I("s_mov_b32 s6, 0")
    b.loop_begin("L_rl4")
    I("s_waitcnt vmcnt(14)"); I("s_barrier"); G_wo(0, 0)
    I("s_waitcnt vmcnt(14)"); I("s_barrier"); G_wo(1, 1)
    I("s_waitcnt vmcnt(14)"); I("s_barrier"); G_wo(2, 0)
    I("s_waitcnt vmcnt(14)"); I("s_barrier"); G_wo(3, 1)
    I("s_add_u32 s6, s6, 1"); I("s_cmp_lt_u32 s6, 7")
    b.loop_end("s_cbranch_scc1 L_rl4")
    I("s_waitcnt vmcnt(14)"); I("s_barrier")
    I("s_waitcnt vmcnt(6)"); I("s_barrier")
    I("s_waitcnt vmcnt(0)"); I("s_barrier")
    st.mark()
    st.dump()
    I("s_endpgm")

def kv_loader(b, o):
    I = b.I; st = Stamps(b, o)
    b.raw("@fence"); b.label("L_KL")
    I("s_sub_u32 s68, s3, 6")
    src_pattern(b, 1, 10, 11, 512, 'k')
    for i in (1, 2, 3): I(f"v_add_u32 v{1+i}, {i*3072}, v1")
    src_pattern(b, 5, 10, 11, 512, 'w')
    I("s_lshl_b32 s4, s40, 4"); I("s_lshl_b32 s5, s39, 1"); I("s_add_u32 s4, s4, s5"); I("s_add_u32 s4, s4, s68")
    I("s_mul_i32 s4, s4, 49152")
    if o.kvsame: I("s_mul_i32 s4, s68, 49152")
    I("s_mul_i32 s8, s68, 12288"); I(f"s_add_u32 s8, s8, {R}")
    KD = 16; VR = 64
    nt = " nt" if o.kvnt else ""
    loads = []
    for kg in range(3):
        for dq in range(3):
            for i in range(4):
                pre = []
                if i == 0:
                    pre = [f"s_add_u32 m0, s8, {(dq+1)*24576 + kg*4096}", f"s_add_u32 s5, s4, {kg*16384 + dq*128}"]
                loads.append(pre + [f"buffer_load_dwordx4 v{1+i}, {SK}, s5 offen offset:{i*1024}{nt} lds"])
        for i in range(4):
            ko = kg * 4 + i
            loads.append([f"s_add_u32 s7, s4, {ko*4096}", f"buffer_load_dwordx4 {vr(KD+4*ko)}, v1, {SK}, s7 offen offset:384{nt}"])
    for ko in range(12):
        for dq in range(4):
            pre = [f"s_add_u32 s7, s4, {ko*4096}"] if dq == 0 else []
            loads.append(pre + [f"buffer_load_dwordx4 {vr(VR+4*(dq*12+ko))}, v5, {SV}, s7 offen offset:{dq*128}{nt}"])
    li = 0
    def issue(n):
        nonlocal li
        for _ in range(n):
            if li < len(loads):
                for t in loads[li]: I(t)
                li += 1
    st.mark()
    if o.warm:
        warmup(b, o)
    issue(o.kpre)
    for n in range(28):
        I("s_barrier")
        issue(o.kfirst if n == 0 else o.kper)
    st.mark()
    issue(len(loads))
    assert li == len(loads), li
    I("v_lshlrev_b32 v6, 4, v0"); I("v_add_u32 v7, s8, v6")
    I("s_mul_i32 s5, s68, 49152"); I(f"s_add_u32 s5, s5, {R}"); I("v_add_u32 v8, s5, v6")
    I("s_waitcnt vmcnt(48)")
    st.mark()
    I("s_barrier")
    for ko in range(12): I(f"ds_write_b128 v7, {vr(KD+4*ko)} offset:{ko*1024}")
    b.drain_lgk()
    I("s_barrier")
    I("s_barrier")
    st.mark()
    for ko in range(12):
        I(f"s_waitcnt vmcnt({44-4*ko})")
        for dq in range(4):
            I(f"ds_write_b128 v8, {vr(VR+4*(dq*12+ko))} offset:{(dq*12+ko)*1024}")
    b.drain_lgk()
    st.mark()
    I("s_barrier")
    st.dump()
    I("s_endpgm")

def warmup(b, o):
    I = b.I
    I("v_lshlrev_b32 v9, 7, v0")
    I("s_lshl_b32 s5, s43, 1"); I("s_add_u32 s5, s5, s68"); I(f"s_mul_i32 s5, s5, {168*128}")
    I("s_mul_i32 s7, s40, 86016"); I("s_add_u32 s5, s5, s7")
    for i in range(3):
        I(f"buffer_load_dword v{12}, v9, {SX}, s5 offen")
        I("s_add_u32 s5, s5, 8192")
    I("v_lshrrev_b32 v13, 3, v0"); I("v_lshlrev_b32 v13, 13, v13"); I("v_and_b32 v14, 7, v0"); I("v_lshl_or_b32 v13, v14, 7, v13")
    I("s_mul_i32 s5, s40, 28"); I("s_mul_i32 s7, s68, 14"); I("s_add_u32 s5, s5, s7"); I("s_lshl_b32 s5, s5, 13")
    I("s_lshl_b32 s7, s39, 10"); I("s_add_u32 s5, s5, s7")
    for i in range(2):
        I(f"buffer_load_dword v{12}, v13, {SWQ}, s5 offen")
        I("s_add_u32 s5, s5, 65536")
    I(f"s_mul_i32 s5, s39, {512*896}"); I("s_mul_i32 s7, s40, 28672"); I("s_add_u32 s5, s5, s7")
    I("s_mul_i32 s7, s68, 14336"); I("s_add_u32 s5, s5, s7")
    for i in range(2):
        I(f"buffer_load_dword v{12}, v9, {SWO}, s5 offen")
        I("s_add_u32 s5, s5, 8192")

def reduce_kernel(b, o):
    I = b.I
    b.raw("@fence")
    b.raw(".p2align 8"); b.raw(".type red_kernel,@function"); b.label("red_kernel")
    I("s_cmp_ge_u32 s2, 336"); I("s_cbranch_scc1 L_rend")
    if o.stamp: I("s_memrealtime s[24:25]")
    I("s_load_dwordx2 s[4:5], s[0:1], 80")
    I("s_load_dwordx2 s[8:9], s[0:1], 96")
    I("v_lshrrev_b32 v1, 6, v0"); I("v_and_b32 v0, 63, v0"); I("v_readfirstlane_b32 s3, v1")
    I("s_lshl_b32 s12, s2, 2"); I("s_add_u32 s12, s12, s3")
    I(f"s_mov_b32 s13, {(2**32 + 13)//14 + 0}")
    I("s_mul_hi_u32 s14, s12, s13")
    I("s_mul_i32 s15, s14, 14"); I("s_sub_u32 s15, s12, s15")
    I(f"s_mov_b32 s13, {(2**32 + 2)//3}")
    I("s_mul_hi_u32 s16, s14, s13")
    I("s_mul_i32 s17, s16, 3"); I("s_sub_u32 s17, s14, s17")
    I("s_mov_b32 s6, 2752512"); I("s_mov_b32 s7, 0x20000")
    I(f"s_mov_b32 s10, {256*PART}"); I("s_mov_b32 s11, 0x20000")
    I(f"s_mul_i32 s18, s16, {8*PART}"); I("s_mul_i32 s19, s15, 6144"); I("s_add_u32 s18, s18, s19")
    I("s_lshl_b32 s19, s17, 10"); I("s_add_u32 s18, s18, s19")
    I("v_lshlrev_b32 v2, 4, v0")
    I("s_waitcnt lgkmcnt(0)")
    for p in range(8):
        I(f"buffer_load_dwordx4 {vr(8+8*p)}, v2, s[8:11], s18 offen {o.ldflags}")
        I(f"buffer_load_dwordx4 {vr(12+8*p)}, v2, s[8:11], s18 offen offset:3072 {o.ldflags}")
        I(f"s_add_u32 s18, s18, {PART}")
    I("s_and_b32 s19, s16, 15"); I("s_mul_i32 s19, s19, 96"); I("s_lshl_b32 s20, s17, 5"); I("s_add_u32 s19, s19, s20")
    I("s_mul_i32 s19, s19, 1792")
    I("s_lshr_b32 s20, s16, 4"); I("s_mul_i32 s20, s20, 896"); I("s_add_u32 s19, s19, s20")
    I("s_lshl_b32 s20, s15, 6"); I("s_add_u32 s19, s19, s20")
    I("s_add_u32 s21, s19, 28672")
    I("v_and_b32 v3, 15, v0"); I("v_mul_u32_u24 v3, 1792, v3")
    I("v_bfe_u32 v4, v0, 5, 1"); I("v_lshl_add_u32 v3, v4, 4, v3")
    I("v_bfe_u32 v4, v0, 4, 1"); I("v_lshl_add_u32 v3, v4, 5, v3")
    I("s_mov_b32 s22, 0xffff0000")
    AC = 72
    for p in range(8):
        I(f"s_waitcnt vmcnt({14-2*p})")
        for r in range(8):
            src = 8 + 8 * p + r
            if p == 0:
                I(f"v_lshlrev_b32 v{AC+2*r}, 16, v{src}"); I(f"v_and_b32 v{AC+2*r+1}, s22, v{src}")
            else:
                I(f"v_lshlrev_b32 v5, 16, v{src}"); I(f"v_and_b32 v6, s22, v{src}")
                I(f"v_add_f32 v{AC+2*r}, v{AC+2*r}, v5"); I(f"v_add_f32 v{AC+2*r+1}, v{AC+2*r+1}, v6")
    for h in range(2):
        d = 8 + 4 * h
        for k, r in enumerate((2 * h, 2 * h + 1, 4 + 2 * h, 5 + 2 * h)):
            I(f"v_cvt_pk_bf16_f32 v{d+k}, v{AC+2*r}, v{AC+2*r+1}")
    for h in range(2):
        d = 8 + 4 * h
        I(f"v_permlane16_swap_b32 v{d}, v{d+2}"); I(f"v_permlane16_swap_b32 v{d+1}, v{d+3}")
    I("buffer_store_dwordx4 v[8:11], v3, s[4:7], s19 offen")
    I("buffer_store_dwordx4 v[12:15], v3, s[4:7], s21 offen")
    if o.stamp:
        I("s_waitcnt vmcnt(0)"); I("s_memrealtime s[26:27]"); I("s_waitcnt lgkmcnt(0)")
        I("s_mov_b32 s10, 0x4000000")
        I("s_lshl_b32 s12, s12, 3"); I(f"s_add_u32 s12, s12, {WS_STAMP + 131072}")
        I("v_mov_b32 v1, 0"); I("v_mov_b32 v2, s24"); I("v_mov_b32 v3, s26")
        I("buffer_store_dwordx2 v[2:3], v1, s[8:11], s12 offen")
        if o.dbg:
            I("s_load_dwordx2 s[8:9], s[0:1], 88"); I("s_mov_b32 s10, 256")
            I("s_waitcnt lgkmcnt(0)")
            I("s_sub_u32 s8, s8, 512"); I("s_subb_u32 s9, s9, 0")
            I("v_sub_u32 v2, 0, v2")
            I("buffer_atomic_umax v2, v1, s[8:11], 0 offen offset:48")
            I("buffer_atomic_umax v3, v1, s[8:11], 0 offen offset:52")
    b.label("L_rend")
    I("s_endpgm")

def kd(name, nv, ns):
    return f""".amdhsa_kernel {name}
  .amdhsa_next_free_vgpr {nv}
  .amdhsa_next_free_sgpr {ns}
  .amdhsa_accum_offset {(nv+3)//4*4}
  .amdhsa_group_segment_fixed_size 0
  .amdhsa_kernarg_size 104
  .amdhsa_user_sgpr_count 2
  .amdhsa_user_sgpr_kernarg_segment_ptr 1
  .amdhsa_system_sgpr_workgroup_id_x 1
.end_amdhsa_kernel
"""

def gen(o):
    b = Builder()
    hdr = f"""; fused attention block: K1 = Qproj+attn+Oproj partials (2 heads / WG), K2 = reduce over head pairs
; @launch kernel={NAME}_kernel grid=(256,1,1) block=(512,1,1) lds=163840
; @launch kernel=red_kernel grid=(336,1,1) block=(256,1,1) lds=0
.amdgcn_target "amdgcn-amd-amdhsa--gfx950"
.text
.globl {NAME}_kernel
.p2align 8
.type {NAME}_kernel,@function
"""
    b.label(f"{NAME}_kernel")
    prologue(b, o)
    compute(b, o)
    ring_loader(b, o)
    kv_loader(b, o)
    b.label("L_end"); b.I("s_endpgm")
    reduce_kernel(b, o)
    tail = '.section .rodata,"a"\n.p2align 6\n' + kd(f"{NAME}_kernel", 256, 100) + ".p2align 6\n" + kd("red_kernel", 88, 32)
    if o.nored: hdr = hdr.replace("; @launch kernel=red_kernel grid=(336,1,1) block=(256,1,1) lds=0\n", "")
    return hdr + b.text() + tail

if __name__ == "__main__":
    ap = argparse.ArgumentParser()
    ap.add_argument("-o", default="cdna_kernels/" + NAME + ".s")
    ap.add_argument("--stamp", action="store_true")
    ap.add_argument("--dump", default="")
    ap.add_argument("--kvnt", type=int, default=0)
    ap.add_argument("--warm", type=int, default=1)
    ap.add_argument("--kpre", type=int, default=0)
    ap.add_argument("--kfirst", type=int, default=24)
    ap.add_argument("--kper", type=int, default=3)
    ap.add_argument("--kvsame", type=int, default=0)
    ap.add_argument("--dbg", type=int, default=0)
    ap.add_argument("--nored", type=int, default=0)
    ap.add_argument("--stflags", default="")
    ap.add_argument("--ldflags", default="")
    o = ap.parse_args()
    open(o.o, "w").write(gen(o))
```

```python
import sys, math, argparse
from asmb import Builder
NAME = "concat_heads__mha_block_cached__gqa_block_cached__near_ridge"

R = 65536; XBUF = 65536
WS_STAMP = 32 << 20
PART = 86016

class Opt: pass

def vr(a, n=4): return f"v[{a}:{a+n-1}]"

def prologue(b, o):
    I = b.I
    I("s_cmp_ge_u32 s2, 256"); I("s_cbranch_scc1 L_end")
    if o.stamp: I("s_memrealtime s[96:97]")
    I("s_load_dwordx8 s[4:11], s[0:1], 0")
    I("s_load_dwordx2 s[12:13], s[0:1], 32")
    I("s_load_dwordx8 s[16:23], s[0:1], 40")
    I("s_load_dwordx2 s[24:25], s[0:1], 72")
    I("s_load_dwordx2 s[26:27], s[0:1], 96")
    I("v_lshrrev_b32 v1, 6, v0")
    I("v_and_b32 v0, 63, v0")
    I("v_readfirstlane_b32 s3, v1")
    I("s_and_b32 s41, s2, 7")
    I("s_lshr_b32 s42, s2, 3")
    I("s_lshr_b32 s38, s41, 2")
    I("s_and_b32 s39, s41, 3"); I("s_lshl_b32 s39, s39, 1")
    I("s_and_b32 s43, s42, 1"); I("s_or_b32 s39, s39, s43")
    I("s_lshr_b32 s40, s42, 1")
    for srd, size in ((44, 1376256), (48, 12582912), (52, 12582912), (56, 3670016), (60, 3670016), (64, 64 << 20)):
        I(f"s_mov_b32 s{srd+2}, {size}"); I(f"s_mov_b32 s{srd+3}, 0x20000")
    I("s_waitcnt lgkmcnt(0)")
    I("s_cmp_eq_u32 s38, 0")
    for srd, a, bb in ((44, 4, 16), (48, 6, 18), (52, 8, 20), (56, 10, 22), (60, 12, 24)):
        I(f"s_cselect_b32 s{srd}, s{a}, s{bb}"); I(f"s_cselect_b32 s{srd+1}, s{a+1}, s{bb+1}")
    I("s_mov_b32 s64, s26"); I("s_mov_b32 s65, s27")
    I("s_cmp_ge_u32 s3, 6"); I("s_cbranch_scc1 L_KL")
    I("s_cmp_ge_u32 s3, 4"); I("s_cbranch_scc1 L_RL")

SX, SK, SV, SWQ, SWO, SWS = "s[44:47]", "s[48:51]", "s[52:55]", "s[56:59]", "s[60:63]", "s[64:67]"

class Stamps:
    def __init__(self, b, o): self.b = b; self.o = o; self.n = 0
    def mark(self):
        if not self.o.stamp: return
        assert self.n < 13
        self.b.I(f"s_memtime s[{70+2*self.n}:{71+2*self.n}]")
        self.b.drain_lgk(force=True)
        self.n += 1
    def dump(self, dbg=False):
        if not self.o.stamp: return
        I = self.b.I
        I("s_memrealtime s[98:99]")
        I("s_waitcnt lgkmcnt(0)")
        I("s_lshl_b32 s4, s2, 3"); I("s_add_u32 s4, s4, s3"); I("s_lshl_b32 s4, s4, 6"); I(f"s_add_u32 s4, s4, {WS_STAMP}")
        I("v_mov_b32 v1, 0")
        for k in range(self.n):
            I(f"v_mov_b32 v2, s{70+2*k}")
            I(f"buffer_store_dword v2, v1, {SWS}, s4 offen offset:{4*k}")
        I("v_mov_b32 v2, s96"); I(f"buffer_store_dword v2, v1, {SWS}, s4 offen offset:56")
        I("v_mov_b32 v2, s98"); I(f"buffer_store_dword v2, v1, {SWS}, s4 offen offset:60")
        if self.o.dbg and dbg:
            I("s_load_dwordx2 s[8:9], s[0:1], 88"); I("s_mov_b32 s10, 256"); I("s_mov_b32 s11, 0x20000")
            I("s_waitcnt lgkmcnt(0)")
            I("s_add_u32 s8, s8, 512"); I("s_addc_u32 s9, s9, 0"); I("s_mov_b64 exec, 1")
            I("s_lshl_b32 s4, s2, 3"); I("s_add_u32 s4, s4, s3"); I("s_cmp_lg_u32 s4, 0"); I("s_cbranch_scc1 L_nodbg")
            for k in range(1, self.n):
                I(f"s_sub_u32 s5, s{70+2*k}, s{68+2*k}"); I("v_mov_b32 v2, s5")
                I(f"buffer_store_dword v2, v1, s[8:11], 0 offen offset:{4*(k-1)}")
            I("v_mov_b32 v2, s96"); I(f"buffer_store_dword v2, v1, s[8:11], 0 offen offset:40")
            self.b.label("L_nodbg")
            I("s_cmp_lg_u32 s3, 0"); I("s_cbranch_scc1 L_end")
            I("v_mov_b32 v2, s98"); I(f"buffer_atomic_umax v2, v1, s[8:11], 0 offen offset:44")

def interleave(b, mfmas, reads, first=2, per=1, pre=None):
    pass

def trbase(b, dst, tmp):
    I = b.I
    I(f"v_lshrrev_b32 v{dst}, 5, v0"); I(f"v_lshlrev_b32 v{dst}, 10, v{dst}")
    I(f"v_bfe_u32 v{tmp}, v0, 2, 3"); I(f"v_lshl_or_b32 v{dst}, v{tmp}, 7, v{dst}")
    I(f"v_bfe_u32 v{tmp}, v0, 3, 2"); I(f"v_lshl_or_b32 v{dst}, v{tmp}, 5, v{dst}")
    I(f"v_and_b32 v{tmp}, 3, v0"); I(f"v_lshl_or_b32 v{dst}, v{tmp}, 3, v{dst}")

def run_sched(b, mf, rd, first, per_gap):
    tok = {}
    ri = 0
    def emit_reads(n, idx):
        nonlocal ri
        k = 0
        while k < n and ri < len(rd) and rd[ri][2] <= idx:
            key, text, _ = rd[ri]
            tok[key] = b.I(text); ri += 1; k += 1
    emit_reads(first, 0)
    for i, (text, need) in enumerate(mf):
        for key in need:
            if key in tok: b.wait_lgk(tok[key])
            else:
                assert key is None or key not in [r[0] for r in rd], f"mfma {i} needs read {key} not yet issued"
        b.I(text)
        emit_reads(per_gap(i), i + 1)
    assert ri == len(rd), f"unissued reads {len(rd)-ri}"

MF = "v_mfma_f32_16x16x32_bf16"

def compute(b, o):
    I = b.I; st = Stamps(b, o)
    I("s_lshr_b32 s68, s3, 1"); I("s_and_b32 s69, s3, 1")
    ABUF = 8; BBUF = 40; QACC = 64
    qacc = lambda t, j: QACC + (t * 3 + j) * 4
    trbase(b, 1, 7)
    I("s_lshl_b32 s4, s68, 13")
    I("v_add_u32 v1, s4, v1")
    for j in (1, 2, 3): I(f"v_xor_b32 v{1+j}, {j<<5}, v1")
    I("v_bfe_u32 v5, v0, 3, 1"); I("v_lshlrev_b32 v5, 10, v5")
    I("v_and_b32 v7, 7, v0"); I("v_lshl_or_b32 v5, v7, 7, v5")
    I("v_lshrrev_b32 v7, 5, v0"); I("v_bfe_u32 v6, v0, 1, 2"); I("v_xor_b32 v7, v7, v6"); I("v_lshl_or_b32 v5, v7, 5, v5")
    I("v_bfe_u32 v7, v0, 4, 1"); I("v_lshl_or_b32 v5, v7, 4, v5")
    I("s_mul_i32 s4, s69, 6144"); I(f"s_add_u32 s4, s4, {XBUF}")
    I("v_add_u32 v5, s4, v5"); I("v_xor_b32 v6, 64, v5")
    for r in range(8, 256): I(f"v_mov_b32 v{r}, 0")
    I("s_mov_b32 s5, 12288")
    I("s_mov_b32 s6, 0")
    st.mark()
    def p1_stage(i, carried_only=False):
        u = i & 1; kp = i >> 1
        pu = (i - 1) & 1; pkp = ((i - 1) & 3) >> 1
        mf = []
        for f in (5, 6, 7):
            for j in range(3):
                a = qacc(8 * pu + f, j)
                mf.append((f"{MF} {vr(a)}, {vr(ABUF+4*f)}, {vr(BBUF+12*pkp+4*j)}, {vr(a)}", []))
        if carried_only:
            for t, _ in mf: I(t)
            return
        for f in range(5):
            for j in range(3):
                a = qacc(8 * u + f, j)
                mf.append((f"{MF} {vr(a)}, {vr(ABUF+4*f)}, {vr(BBUF+12*kp+4*j)}, {vr(a)}", [('A', f), ('B', j)]))
        rd = []
        def rdA(f):
            sg = f >> 2; j = f & 3
            mi = {5: 3, 6: 6, 7: 9}.get(f, 0)
            for e in range(2):
                rd.append((('A', f), f"ds_read_b64_tr_b16 {vr(ABUF+4*f+2*e,2)}, v{1+j} offset:{i*16384+sg*4096+e*2048}", mi))
        rdA(0)
        if u == 0:
            for j in range(3):
                rd.append((('B', j), f"ds_read_b128 {vr(BBUF+12*kp+4*j)}, v{5+kp} offset:{j*2048}", 0))
        for f in range(1, 8): rdA(f)
        I("s_barrier")
        run_sched(b, mf, rd, 2, lambda idx: (2 if idx % 3 == 0 else 1))
        b.drain_lgk()
    b.loop_begin("L_p1")
    for i in range(4):
        p1_stage(i)
        if i == 2:
            I("v_add_u32 v5, s5, v5"); I("v_add_u32 v6, s5, v6"); I("s_sub_u32 s5, 0, s5")
    I("s_add_u32 s6, s6, 1"); I("s_cmp_lt_u32 s6, 7")
    b.loop_end("s_cbranch_scc1 L_p1")
    I("s_barrier")
    p1_stage(0, carried_only=True)
    st.mark()
    QP = 40
    qp = lambda T, j: QP + (T * 3 + j) * 4
    for T in range(8):
        for j in range(3):
            d = qp(T, j); a0 = qacc(2 * T, j); a1 = qacc(2 * T + 1, j)
            I(f"v_cvt_pk_bf16_f32 v{d}, v{a0}, v{a0+1}"); I(f"v_cvt_pk_bf16_f32 v{d+1}, v{a0+2}, v{a0+3}")
            I(f"v_cvt_pk_bf16_f32 v{d+2}, v{a1}, v{a1+1}"); I(f"v_cvt_pk_bf16_f32 v{d+3}, v{a1+2}, v{a1+3}")
        for j in range(3):
            d = qp(T, j)
            I(f"v_permlane16_swap_b32 v{d}, v{d+2}"); I(f"v_permlane16_swap_b32 v{d+1}, v{d+3}")
    if o.dump == 'q':
        dump_regs(b, QP, 96)
    I("v_bfe_u32 v1, v0, 3, 1"); I("v_lshlrev_b32 v1, 10, v1")
    I("v_and_b32 v7, 7, v0"); I("v_lshl_or_b32 v1, v7, 7, v1")
    I("v_bfe_u32 v7, v0, 5, 1"); I("v_bfe_u32 v6, v0, 1, 1"); I("v_xor_b32 v7, v7, v6"); I("v_lshl_or_b32 v1, v7, 4, v1")
    I("v_bfe_u32 v7, v0, 4, 1"); I("v_lshl_or_b32 v1, v7, 5, v1")
    I("v_bfe_u32 v7, v0, 2, 1"); I("v_lshl_or_b32 v1, v7, 6, v1")
    I("s_mul_i32 s4, s68, 12288"); I(f"s_add_u32 s4, s4, {R}")
    I("v_add_u32 v1, s4, v1"); I("v_xor_b32 v2, 64, v1")
    I("v_add_u32 v3, 49152, v1"); I("v_add_u32 v4, 49152, v2")
    st.mark()
    SACC = 136; KBUF = 208
    sacc = lambda kt, j: SACC + (kt * 3 + j) * 4
    def krd(T, kt):
        dq = T >> 1; pos = (dq + 1) & 3
        off = pos * 24576 + kt * 2048
        reg = 1 + (T & 1)
        if off >= 49152: off -= 49152; reg += 2
        buf = KBUF + ((T & 1) * 6 + kt) * 4
        return f"ds_read_b128 {vr(buf)}, v{reg} offset:{off}"
    tok = {}
    for kt in range(6): tok[(0, kt)] = I(krd(0, kt))
    for T in range(8):
        if T == 4: I("s_barrier")
        for kt in range(6):
            b.wait_lgk(tok[(T, kt)])
            buf = KBUF + ((T & 1) * 6 + kt) * 4
            for j in range(3):
                a = sacc(kt, j)
                I(f"{MF} {vr(a)}, {vr(buf)}, {vr(qp(T,j))}, {'0' if T == 0 else vr(a)}")
                if j == 0 and T < 7: tok[(T + 1, kt)] = I(krd(T + 1, kt))
    b.drain_lgk()
    I("s_barrier")
    st.mark()
    PP = 208
    pp = lambda U, j: PP + (U * 3 + j) * 4
    I(f"s_mov_b32 s7, {hex(f32bits(math.log2(math.e) / 16.0))}")
    M = [8, 9, 10]; Tm = [11, 12, 13]; L = [14, 15, 16]
    vals = lambda j: [sacc(kt, j) + r for kt in range(6) for r in range(4)]
    for step in range(12):
        for j in range(3):
            v = vals(j)
            if step == 0: I(f"v_max3_f32 v{M[j]}, v{v[0]}, v{v[1]}, v{v[2]}")
            elif step < 11: I(f"v_max3_f32 v{M[j]}, v{M[j]}, v{v[2*step+1]}, v{v[2*step+2]}")
            else: I(f"v_max_f32 v{M[j]}, v{M[j]}, v{v[23]}")
    for sw in ("v_permlane16_swap_b32", "v_permlane32_swap_b32"):
        for j in range(3): I(f"v_mov_b32 v{Tm[j]}, v{M[j]}")
        for j in range(3): I(f"{sw} v{M[j]}, v{Tm[j]}")
        for j in range(3): I(f"v_max_f32 v{M[j]}, v{M[j]}, v{Tm[j]}")
    for j in range(3): I(f"v_mul_f32 v{M[j]}, s7, v{M[j]}")
    for k in range(24):
        for j in range(3):
            v = vals(j)[k]; I(f"v_fma_f32 v{v}, v{v}, s7, -v{M[j]}")
        for j in range(3):
            v = vals(j)[k]; I(f"v_exp_f32 v{v}, v{v}")
        if k >= 1:
            for j in range(3):
                v = vals(j)
                if k == 1: pass
                elif k == 2: I(f"v_add_f32 v{L[j]}, v{v[0]}, v{v[1]}")
                else: I(f"v_add_f32 v{L[j]}, v{L[j]}, v{v[k-1]}")
    for j in range(3): I(f"v_add_f32 v{L[j]}, v{L[j]}, v{vals(j)[23]}")
    for sw in ("v_permlane16_swap_b32", "v_permlane32_swap_b32"):
        for j in range(3): I(f"v_mov_b32 v{Tm[j]}, v{L[j]}")
        for j in range(3): I(f"{sw} v{L[j]}, v{Tm[j]}")
        for j in range(3): I(f"v_add_f32 v{L[j]}, v{L[j]}, v{Tm[j]}")
    for j in range(3): I(f"v_rcp_f32 v{L[j]}, v{L[j]}")
    for kt in range(6):
        for j in range(3):
            a = sacc(kt, j)
            for r in range(4): I(f"v_mul_f32 v{a+r}, v{a+r}, v{L[j]}")
            d = pp(kt >> 1, j) + (kt & 1) * 2
            I(f"v_cvt_pk_bf16_f32 v{d}, v{a}, v{a+1}"); I(f"v_cvt_pk_bf16_f32 v{d+1}, v{a+2}, v{a+3}")
    if o.dump == 'p':
        dump_regs(b, PP, 36)
    trbase(b, 1, 7)
    I("s_mul_i32 s4, s68, 49152"); I(f"s_add_u32 s4, s4, {R}")
    I("v_add_u32 v1, s4, v1")
    for j in (1, 2, 3): I(f"v_xor_b32 v{1+j}, {j<<5}, v1")
    st.mark()
    I("s_barrier")
    st.mark()
    VBUF = 8; NVB = 8; OACC = 136; OP = 40
    oacc = lambda t, j: OACC + ((t % 6) * 3 + j) * 4
    op = lambda kap, j: OP + (kap * 3 + j) * 4
    frs = [(t, U) for t in range(16) for U in range(3)]
    def vrd(n):
        t, U = frs[n]; dq = t >> 2; j = t & 3; buf = VBUF + (n % NVB) * 4
        I(f"ds_read_b64_tr_b16 {vr(buf,2)}, v{1+j} offset:{(dq*12+4*U)*1024}")
        return I(f"ds_read_b64_tr_b16 {vr(buf+2,2)}, v{1+j} offset:{(dq*12+4*U+2)*1024}")
    def ocvt(t):
        L_ = []
        for j in range(3):
            a = oacc(t, j); d = op(t >> 1, j) + (t & 1) * 2
            L_.append(f"v_cvt_pk_bf16_f32 v{d}, v{a}, v{a+1}"); L_.append(f"v_cvt_pk_bf16_f32 v{d+1}, v{a+2}, v{a+3}")
        return L_
    LA = 4
    tok = {}
    for n in range(LA): tok[n] = vrd(n)
    pend = []
    for n, (t, U) in enumerate(frs):
        b.wait_lgk(tok[n])
        buf = VBUF + (n % NVB) * 4
        for j in range(3):
            a = oacc(t, j)
            I(f"{MF} {vr(a)}, {vr(buf)}, {vr(pp(U,j))}, {'0' if U == 0 else vr(a)}")
            if j == 0 and n + LA < len(frs): tok[n + LA] = vrd(n + LA)
            if j >= 1 and U >= 1:
                for _ in range(2 if j == 1 else 1):
                    if pend: I(pend.pop(0))
        if U == 2: pend += ocvt(t)
    for x in pend: I(x)
    b.drain_lgk()
    I("v_lshlrev_b32 v5, 4, v0")
    I("s_mul_i32 s4, s68, 49152"); I("s_mul_i32 s5, s69, 3072"); I("s_add_u32 s4, s4, s5"); I(f"s_add_u32 s4, s4, {R}")
    I("v_add_u32 v5, s4, v5")
    st.mark()
    I("s_barrier")
    zs = list(range(136, 256))
    for kap in range(8):
        for j in range(3):
            I(f"ds_write_b128 v5, {vr(op(kap,j))} offset:{kap*6144+j*1024}")
            for _ in range(5):
                if zs: I(f"v_mov_b32 v{zs.pop(0)}, 0")
    trbase(b, 6, 7)
    I("s_lshl_b32 s4, s3, 12")
    I("v_add_u32 v1, s4, v6")
    for j in (1, 2, 3): I(f"v_xor_b32 v{1+j}, {j<<5}, v1")
    for m in range(3):
        I("s_mul_i32 s4, s3, 3"); I(f"s_add_u32 s4, s4, {m}")
        I("s_and_b32 s5, s4, 3"); I("s_lshl_b32 s5, s5, 5")
        I("s_lshr_b32 s4, s4, 2"); I("s_lshl_b32 s4, s4, 12")
        I(f"v_xor_b32 v{36+m}, s5, v6"); I(f"v_add_u32 v{36+m}, s4, v{36+m}")
    b.drain_lgk()
    I("v_lshlrev_b32 v5, 4, v0"); I(f"v_add_u32 v5, {R}, v5")
    for r in list(range(88, 136)) + list(range(8, 36)) + list(range(64, 88)): I(f"v_mov_b32 v{r}, 0")
    I("s_mov_b32 s6, 0")
    st.mark()
    A4 = 8; B4 = 40; ACC4 = 88
    acc4 = lambda m, q: ACC4 + (m * 6 + q) * 4
    def p4_stage(i, carried_only=False):
        u = i & 1; kp = i >> 1
        pkp = ((i - 1) & 3) >> 1
        carried = (5, 6) if u == 0 else (2, 3)
        ckp = pkp
        mine = (0, 1) if u == 0 else (4,)
        allf = (0, 1, 2, 3) if u == 0 else (4, 5, 6)
        mf = []
        for f in carried:
            for q in range(6):
                a = acc4(f, q)
                mf.append((f"{MF} {vr(a)}, {vr(A4+4*f)}, {vr(B4+24*ckp+4*q)}, {vr(a)}", []))
        if carried_only:
            for t, _ in mf: I(t)
            return
        for f in mine:
            for q in range(6):
                a = acc4(f, q)
                mf.append((f"{MF} {vr(a)}, {vr(A4+4*f)}, {vr(B4+24*kp+4*q)}, {vr(a)}", [('A', f), ('B', q)]))
        rd = []
        def rdA(f):
            areg = 1 + f if f < 4 else 36 + f - 4
            for e in range(2):
                rd.append((('A', f), f"ds_read_b64_tr_b16 {vr(A4+4*f+2*e,2)}, v{areg} offset:{i*16384+e*2048}", 0))
        rdA(allf[0])
        if u == 0:
            for q in range(6):
                rd.append((('B', q), f"ds_read_b128 {vr(B4+24*kp+4*q)}, v5 offset:{kp*6144+q*1024}", 0))
        for f in allf[1:]: rdA(f)
        I("s_barrier")
        run_sched(b, mf, rd, 2, lambda idx: 1)
        b.drain_lgk()
    b.loop_begin("L_p4")
    for i in range(4):
        p4_stage(i)
        if i == 2: I("v_add_u32 v5, 12288, v5")
    I("s_add_u32 s6, s6, 1"); I("s_cmp_lt_u32 s6, 8")
    b.loop_end("s_cbranch_scc1 L_p4")
    p4_stage(0, carried_only=True)
    st.mark()
    I("v_lshlrev_b32 v5, 4, v0")
    I("s_lshl_b32 s4, s38, 4"); I("s_add_u32 s4, s4, s40"); I("s_lshl_b32 s4, s4, 3"); I("s_add_u32 s4, s4, s39")
    I(f"s_mul_i32 s4, s4, {PART}")
    I(f"s_mul_i32 s5, s3, {4*3072}"); I("s_add_u32 s5, s5, s4")
    I(f"s_mul_i32 s7, s3, {3*3072}"); I("s_add_u32 s7, s7, s4"); I(f"s_add_u32 s7, s7, {16*3072}")
    k = 0
    for m in range(7):
        if m == 4: I("s_mov_b32 s5, s7")
        for jp in range(3):
            d = 40 + (k % 12) * 4; k += 1
            a0 = acc4(m, 2 * jp); a1 = acc4(m, 2 * jp + 1)
            I(f"v_cvt_pk_bf16_f32 v{d}, v{a0}, v{a0+1}"); I(f"v_cvt_pk_bf16_f32 v{d+1}, v{a0+2}, v{a0+3}")
            I(f"v_cvt_pk_bf16_f32 v{d+2}, v{a1}, v{a1+1}"); I(f"v_cvt_pk_bf16_f32 v{d+3}, v{a1+2}, v{a1+3}")
            if k == 13: I("s_waitcnt vmcnt(6)")
            I(f"buffer_store_dwordx4 {vr(d)}, v5, {SWS}, s5 offen offset:{jp*1024} {o.stflags}")
        I("s_add_u32 s5, s5, 3072")
    if o.stamp:
        I("s_waitcnt vmcnt(0)")
    st.mark()
    st.dump(True)
    I("s_endpgm")

def dump_regs(b, base, n):
    I = b.I
    I("s_lshl_b32 s4, s2, 2"); I("s_add_u32 s4, s4, s3"); I(f"s_mul_i32 s4, s4, {n*256}"); I(f"s_add_u32 s4, s4, {40<<20}")
    I("v_lshlrev_b32 v7, 2, v0")
    for r in range(n):
        I(f"buffer_store_dword v{base+r}, v7, {SWS}, s4 offen")
        I("s_add_u32 s4, s4, 256")
    I("s_waitcnt vmcnt(0)")

import struct
def f32bits(x): return struct.unpack("<I", struct.pack("<f", x))[0]

def src_pattern(b, dst, tmp, tmp2, pitch, kind):
    I = b.I
    if kind == 'wq':
        I(f"v_bfe_u32 v{tmp}, v0, 3, 2"); I(f"v_bfe_u32 v{tmp2}, v0, 5, 1"); I(f"v_lshl_or_b32 v{tmp}, v{tmp2}, 3, v{tmp}")
    else:
        I(f"v_lshrrev_b32 v{tmp}, 3, v0")
    I(f"v_mul_u32_u24 v{dst}, {pitch}, v{tmp}")
    if kind == 'k':
        I(f"v_bfe_u32 v{tmp}, v0, 4, 1"); I(f"v_bfe_u32 v{tmp2}, v0, 5, 1"); I(f"v_lshl_or_b32 v{tmp}, v{tmp2}, 2, v{tmp}")
    else:
        I(f"v_bfe_u32 v{tmp}, v0, 4, 2"); I(f"v_lshlrev_b32 v{tmp}, 1, v{tmp}")
    I(f"v_and_b32 v{tmp2}, 7, v0"); I(f"v_xor_b32 v{tmp}, v{tmp}, v{tmp2}")
    I(f"v_lshl_add_u32 v{dst}, v{tmp}, 4, v{dst}")

def ring_loader(b, o):
    I = b.I; st = Stamps(b, o)
    b.raw("@fence"); b.label("L_RL")
    I("s_sub_u32 s68, s3, 4")
    src_pattern(b, 1, 10, 11, 8192, 'wq')
    for i, ro in enumerate((0, 16, 4, 20)):
        if i: I(f"v_add_u32 v{1+i}, {ro*8192 - i*1024}, v1")
    src_pattern(b, 5, 10, 11, 896, 'w')
    for i in (1, 2, 3): I(f"v_add_u32 v{5+i}, {i*6144}, v5")
    I("s_lshl_b32 s4, s39, 10"); I("s_lshl_b32 s5, s68, 9"); I("s_add_u32 s4, s4, s5")
    I("s_lshl_b32 s8, s68, 13")
    I("s_mul_i32 s9, s40, 86016"); I(f"s_mul_i32 s5, s68, {6*7168}"); I("s_add_u32 s9, s9, s5")
    I("s_mul_i32 s10, s68, 6144"); I(f"s_add_u32 s10, s10, {XBUF}")
    I("s_mov_b32 s11, 12288")
    I(f"s_mul_i32 s12, s39, {512*896}")
    I("s_lshl_b32 s13, s68, 8")
    I(f"s_mul_i32 s15, s68, {2*8*896}")
    I("s_lshl_b32 s16, s68, 11")
    q = []
    def G_wq(slot, u, adv):
        for sg in range(2):
            I(f"s_add_u32 m0, s8, {slot*16384 + sg*4096}")
            I(f"s_add_u32 s5, s4, {u*256 + sg*128}")
            for i in range(4):
                I(f"buffer_load_dwordx4 v{1+i}, {SWQ}, s5 offen offset:{i*1024} lds")
        if adv: I(f"s_add_u32 s4, s4, {32*8192}")
        q.append(8)
    def X():
        I("s_mov_b32 m0, s10")
        for i in range(4): I(f"buffer_load_dwordx4 v{5+i}, {SX}, s9 offen offset:{i*1024} lds")
        I("s_add_u32 m0, s10, 4096"); I(f"s_add_u32 s5, s9, {4*7168}")
        for i in range(2): I(f"buffer_load_dwordx4 v{5+i}, {SX}, s5 offen offset:{i*1024} lds")
        I("s_add_u32 s9, s9, 128"); I("s_add_u32 s10, s10, s11"); I("s_sub_u32 s11, 0, s11")
    def G_wo(slot, u):
        if u == 0:
            for sg in range(2):
                I(f"s_add_u32 m0, s8, {slot*16384 + sg*4096}")
                I("s_add_u32 s5, s12, s13")
                if sg: I("s_add_u32 s5, s5, 128")
                for i in range(4):
                    I(f"buffer_load_dwordx4 v{5+i}, {SWO}, s5 offen offset:{i*1024} lds")
        else:
            I(f"s_add_u32 m0, s8, {slot*16384}")
            I("s_add_u32 s5, s12, s13"); I("s_add_u32 s5, s5, 512")
            for i in range(4):
                I(f"buffer_load_dwordx4 v{5+i}, {SWO}, s5 offen offset:{i*1024} lds")
            I(f"s_add_u32 m0, s16, {slot*16384 + 4096}")
            I("s_add_u32 s5, s12, s15"); I(f"s_add_u32 s5, s5, {512+128}")
            for i in range(2):
                I(f"buffer_load_dwordx4 v{5+i}, {SWO}, s5 offen offset:{i*1024} lds")
            I(f"s_add_u32 s12, s12, {32*896}")
    st.mark()
    X(); G_wq(0, 0, False); G_wq(1, 1, True); G_wq(2, 0, False)
    I("s_mov_b32 s6, 0")
    b.loop_begin("L_rl1")
    I("s_waitcnt vmcnt(16)"); I("s_barrier"); X(); G_wq(3, 1, True)
    I("s_waitcnt vmcnt(22)"); I("s_barrier"); G_wq(0, 0, False)
    I("s_waitcnt vmcnt(22)"); I("s_barrier"); G_wq(1, 1, True)
    I("s_waitcnt vmcnt(16)"); I("s_barrier"); G_wq(2, 0, False)
    I("s_add_u32 s6, s6, 1"); I("s_cmp_lt_u32 s6, 6")
    b.loop_end("s_cbranch_scc1 L_rl1")
    I("s_waitcnt vmcnt(16)"); I("s_barrier"); G_wq(3, 1, True)
    I("s_waitcnt vmcnt(16)"); I("s_barrier"); G_wo(0, 0)
    I("s_waitcnt vmcnt(16)"); I("s_barrier"); G_wo(1, 1)
    I("s_waitcnt vmcnt(14)"); I("s_barrier"); G_wo(2, 0)
    st.mark()
    I("s_barrier"); G_wo(3, 1)
    I("s_barrier")
    I("s_barrier")
    I("s_barrier")
    I("s_barrier")
    st.mark()
    I("s_waitcnt vmcnt(20)"); I("s_barrier")
    I("s_mov_b32 s6, 0")
    b.loop_begin("L_rl4")
    I("s_waitcnt vmcnt(14)"); I("s_barrier"); G_wo(0, 0)
    I("s_waitcnt vmcnt(14)"); I("s_barrier"); G_wo(1, 1)
    I("s_waitcnt vmcnt(14)"); I("s_barrier"); G_wo(2, 0)
    I("s_waitcnt vmcnt(14)"); I("s_barrier"); G_wo(3, 1)
    I("s_add_u32 s6, s6, 1"); I("s_cmp_lt_u32 s6, 7")
    b.loop_end("s_cbranch_scc1 L_rl4")
    I("s_waitcnt vmcnt(14)"); I("s_barrier")
    I("s_waitcnt vmcnt(6)"); I("s_barrier")
    I("s_waitcnt vmcnt(0)"); I("s_barrier")
    st.mark()
    st.dump()
    I("s_endpgm")

def kv_loader(b, o):
    I = b.I; st = Stamps(b, o)
    b.raw("@fence"); b.label("L_KL")
    I("s_sub_u32 s68, s3, 6")
    src_pattern(b, 1, 10, 11, 512, 'k')
    for i in (1, 2, 3): I(f"v_add_u32 v{1+i}, {i*3072}, v1")
    src_pattern(b, 5, 10, 11, 512, 'w')
    I("s_lshl_b32 s4, s40, 4"); I("s_lshl_b32 s5, s39, 1"); I("s_add_u32 s4, s4, s5"); I("s_add_u32 s4, s4, s68")
    I("s_mul_i32 s4, s4, 49152")
    if o.kvsame: I("s_mul_i32 s4, s68, 49152")
    I("s_mul_i32 s8, s68, 12288"); I(f"s_add_u32 s8, s8, {R}")
    KD = 16; VR = 64
    nt = " nt" if o.kvnt else ""
    loads = []
    for kg in range(3):
        for dq in range(3):
            for i in range(4):
                pre = []
                if i == 0:
                    pre = [f"s_add_u32 m0, s8, {(dq+1)*24576 + kg*4096}", f"s_add_u32 s5, s4, {kg*16384 + dq*128}"]
                loads.append(pre + [f"buffer_load_dwordx4 v{1+i}, {SK}, s5 offen offset:{i*1024}{nt} lds"])
        for i in range(4):
            ko = kg * 4 + i
            loads.append([f"s_add_u32 s7, s4, {ko*4096}", f"buffer_load_dwordx4 {vr(KD+4*ko)}, v1, {SK}, s7 offen offset:384{nt}"])
    for ko in range(12):
        for dq in range(4):
            pre = [f"s_add_u32 s7, s4, {ko*4096}"] if dq == 0 else []
            loads.append(pre + [f"buffer_load_dwordx4 {vr(VR+4*(dq*12+ko))}, v5, {SV}, s7 offen offset:{dq*128}{nt}"])
    li = 0
    def issue(n):
        nonlocal li
        for _ in range(n):
            if li < len(loads):
                for t in loads[li]: I(t)
                li += 1
    st.mark()
    if o.warm:
        warmup(b, o)
    issue(o.kpre)
    for n in range(28):
        I("s_barrier")
        issue(o.kfirst if n == 0 else o.kper)
    st.mark()
    issue(len(loads))
    assert li == len(loads), li
    I("v_lshlrev_b32 v6, 4, v0"); I("v_add_u32 v7, s8, v6")
    I("s_mul_i32 s5, s68, 49152"); I(f"s_add_u32 s5, s5, {R}"); I("v_add_u32 v8, s5, v6")
    I("s_waitcnt vmcnt(48)")
    st.mark()
    I("s_barrier")
    for ko in range(12): I(f"ds_write_b128 v7, {vr(KD+4*ko)} offset:{ko*1024}")
    b.drain_lgk()
    I("s_barrier")
    I("s_barrier")
    st.mark()
    for ko in range(12):
        I(f"s_waitcnt vmcnt({44-4*ko})")
        for dq in range(4):
            I(f"ds_write_b128 v8, {vr(VR+4*(dq*12+ko))} offset:{(dq*12+ko)*1024}")
    b.drain_lgk()
    st.mark()
    I("s_barrier")
    st.dump()
    I("s_endpgm")

def warmup(b, o):
    I = b.I
    I("v_lshlrev_b32 v9, 7, v0")
    I("s_lshl_b32 s5, s43, 1"); I("s_add_u32 s5, s5, s68"); I(f"s_mul_i32 s5, s5, {168*128}")
    I("s_mul_i32 s7, s40, 86016"); I("s_add_u32 s5, s5, s7")
    for i in range(3):
        I(f"buffer_load_dword v{12}, v9, {SX}, s5 offen")
        I("s_add_u32 s5, s5, 8192")
    I("v_lshrrev_b32 v13, 3, v0"); I("v_lshlrev_b32 v13, 13, v13"); I("v_and_b32 v14, 7, v0"); I("v_lshl_or_b32 v13, v14, 7, v13")
    I("s_mul_i32 s5, s40, 28"); I("s_mul_i32 s7, s68, 14"); I("s_add_u32 s5, s5, s7"); I("s_lshl_b32 s5, s5, 13")
    I("s_lshl_b32 s7, s39, 10"); I("s_add_u32 s5, s5, s7")
    for i in range(2):
        I(f"buffer_load_dword v{12}, v13, {SWQ}, s5 offen")
        I("s_add_u32 s5, s5, 65536")
    I(f"s_mul_i32 s5, s39, {512*896}"); I("s_mul_i32 s7, s40, 28672"); I("s_add_u32 s5, s5, s7")
    I("s_mul_i32 s7, s68, 14336"); I("s_add_u32 s5, s5, s7")
    for i in range(2):
        I(f"buffer_load_dword v{12}, v9, {SWO}, s5 offen")
        I("s_add_u32 s5, s5, 8192")

def reduce_kernel(b, o):
    I = b.I
    b.raw("@fence")
    b.raw(".p2align 8"); b.raw(".type red_kernel,@function"); b.label("red_kernel")
    I("s_cmp_ge_u32 s2, 336"); I("s_cbranch_scc1 L_rend")
    if o.stamp: I("s_memrealtime s[24:25]")
    I("s_load_dwordx2 s[4:5], s[0:1], 80")
    I("s_load_dwordx2 s[8:9], s[0:1], 96")
    I("v_lshrrev_b32 v1, 6, v0"); I("v_and_b32 v0, 63, v0"); I("v_readfirstlane_b32 s3, v1")
    I("s_lshl_b32 s12, s2, 2"); I("s_add_u32 s12, s12, s3")
    I(f"s_mov_b32 s13, {(2**32 + 13)//14 + 0}")
    I("s_mul_hi_u32 s14, s12, s13")
    I("s_mul_i32 s15, s14, 14"); I("s_sub_u32 s15, s12, s15")
    I(f"s_mov_b32 s13, {(2**32 + 2)//3}")
    I("s_mul_hi_u32 s16, s14, s13")
    I("s_mul_i32 s17, s16, 3"); I("s_sub_u32 s17, s14, s17")
    I("s_mov_b32 s6, 2752512"); I("s_mov_b32 s7, 0x20000")
    I(f"s_mov_b32 s10, {256*PART}"); I("s_mov_b32 s11, 0x20000")
    I(f"s_mul_i32 s18, s16, {8*PART}"); I("s_mul_i32 s19, s15, 6144"); I("s_add_u32 s18, s18, s19")
    I("s_lshl_b32 s19, s17, 10"); I("s_add_u32 s18, s18, s19")
    I("v_lshlrev_b32 v2, 4, v0")
    I("s_waitcnt lgkmcnt(0)")
    for p in range(8):
        I(f"buffer_load_dwordx4 {vr(8+8*p)}, v2, s[8:11], s18 offen {o.ldflags}")
        I(f"buffer_load_dwordx4 {vr(12+8*p)}, v2, s[8:11], s18 offen offset:3072 {o.ldflags}")
        I(f"s_add_u32 s18, s18, {PART}")
    I("s_and_b32 s19, s16, 15"); I("s_mul_i32 s19, s19, 96"); I("s_lshl_b32 s20, s17, 5"); I("s_add_u32 s19, s19, s20")
    I("s_mul_i32 s19, s19, 1792")
    I("s_lshr_b32 s20, s16, 4"); I("s_mul_i32 s20, s20, 896"); I("s_add_u32 s19, s19, s20")
    I("s_lshl_b32 s20, s15, 6"); I("s_add_u32 s19, s19, s20")
    I("s_add_u32 s21, s19, 28672")
    I("v_and_b32 v3, 15, v0"); I("v_mul_u32_u24 v3, 1792, v3")
    I("v_bfe_u32 v4, v0, 5, 1"); I("v_lshl_add_u32 v3, v4, 4, v3")
    I("v_bfe_u32 v4, v0, 4, 1"); I("v_lshl_add_u32 v3, v4, 5, v3")
    I("s_mov_b32 s22, 0xffff0000")
    AC = 72
    for p in range(8):
        I(f"s_waitcnt vmcnt({14-2*p})")
        for r in range(8):
            src = 8 + 8 * p + r
            if p == 0:
                I(f"v_lshlrev_b32 v{AC+2*r}, 16, v{src}"); I(f"v_and_b32 v{AC+2*r+1}, s22, v{src}")
            else:
                I(f"v_lshlrev_b32 v5, 16, v{src}"); I(f"v_and_b32 v6, s22, v{src}")
                I(f"v_add_f32 v{AC+2*r}, v{AC+2*r}, v5"); I(f"v_add_f32 v{AC+2*r+1}, v{AC+2*r+1}, v6")
    for h in range(2):
        d = 8 + 4 * h
        for k, r in enumerate((2 * h, 2 * h + 1, 4 + 2 * h, 5 + 2 * h)):
            I(f"v_cvt_pk_bf16_f32 v{d+k}, v{AC+2*r}, v{AC+2*r+1}")
    for h in range(2):
        d = 8 + 4 * h
        I(f"v_permlane16_swap_b32 v{d}, v{d+2}"); I(f"v_permlane16_swap_b32 v{d+1}, v{d+3}")
    I("buffer_store_dwordx4 v[8:11], v3, s[4:7], s19 offen")
    I("buffer_store_dwordx4 v[12:15], v3, s[4:7], s21 offen")
    if o.stamp:
        I("s_waitcnt vmcnt(0)"); I("s_memrealtime s[26:27]"); I("s_waitcnt lgkmcnt(0)")
        I("s_mov_b32 s10, 0x4000000")
        I("s_lshl_b32 s12, s12, 3"); I(f"s_add_u32 s12, s12, {WS_STAMP + 131072}")
        I("v_mov_b32 v1, 0"); I("v_mov_b32 v2, s24"); I("v_mov_b32 v3, s26")
        I("buffer_store_dwordx2 v[2:3], v1, s[8:11], s12 offen")
        if o.dbg:
            I("s_load_dwordx2 s[8:9], s[0:1], 88"); I("s_mov_b32 s10, 256")
            I("s_waitcnt lgkmcnt(0)")
            I("s_mov_b64 exec, 1")
            I("s_cmp_lg_u32 s3, 0"); I("s_cbranch_scc1 L_rend")
            I("v_sub_u32 v2, 0, v2")
            I("buffer_atomic_umax v2, v1, s[8:11], 0 offen offset:48")
            I("buffer_atomic_umax v3, v1, s[8:11], 0 offen offset:52")
    b.label("L_rend")
    I("s_endpgm")

def kd(name, nv, ns):
    return f""".amdhsa_kernel {name}
  .amdhsa_next_free_vgpr {nv}
  .amdhsa_next_free_sgpr {ns}
  .amdhsa_accum_offset {(nv+3)//4*4}
  .amdhsa_group_segment_fixed_size 0
  .amdhsa_kernarg_size 104
  .amdhsa_user_sgpr_count 2
  .amdhsa_user_sgpr_kernarg_segment_ptr 1
  .amdhsa_system_sgpr_workgroup_id_x 1
.end_amdhsa_kernel
"""

def gen(o):
    b = Builder()
    hdr = f"""; fused attention block: K1 = Qproj+attn+Oproj partials (2 heads / WG), K2 = reduce over head pairs
; @launch kernel={NAME}_kernel grid=(256,1,1) block=(512,1,1) lds=163840
; @launch kernel=red_kernel grid=(336,1,1) block=(256,1,1) lds=0
.amdgcn_target "amdgcn-amd-amdhsa--gfx950"
.text
.globl {NAME}_kernel
.p2align 8
.type {NAME}_kernel,@function
"""
    b.label(f"{NAME}_kernel")
    prologue(b, o)
    compute(b, o)
    ring_loader(b, o)
    kv_loader(b, o)
    b.label("L_end"); b.I("s_endpgm")
    reduce_kernel(b, o)
    tail = '.section .rodata,"a"\n.p2align 6\n' + kd(f"{NAME}_kernel", 256, 100) + ".p2align 6\n" + kd("red_kernel", 88, 32)
    if o.nored: hdr = hdr.replace("; @launch kernel=red_kernel grid=(336,1,1) block=(256,1,1) lds=0\n", "")
    return hdr + b.text() + tail

if __name__ == "__main__":
    ap = argparse.ArgumentParser()
    ap.add_argument("-o", default="cdna_kernels/" + NAME + ".s")
    ap.add_argument("--stamp", action="store_true")
    ap.add_argument("--dump", default="")
    ap.add_argument("--kvnt", type=int, default=0)
    ap.add_argument("--warm", type=int, default=1)
    ap.add_argument("--kpre", type=int, default=0)
    ap.add_argument("--kfirst", type=int, default=24)
    ap.add_argument("--kper", type=int, default=3)
    ap.add_argument("--kvsame", type=int, default=0)
    ap.add_argument("--dbg", type=int, default=0)
    ap.add_argument("--nored", type=int, default=0)
    ap.add_argument("--stflags", default="")
    ap.add_argument("--ldflags", default="")
    o = ap.parse_args()
    open(o.o, "w").write(gen(o))
```

```python
import sys, math, argparse
from asmb import Builder
NAME = "concat_heads__mha_block_cached__gqa_block_cached__near_ridge"

R = 65536; XBUF = 65536
WS_STAMP = 32 << 20
PART = 86016

class Opt: pass

def vr(a, n=4): return f"v[{a}:{a+n-1}]"

def prologue(b, o):
    I = b.I
    I("s_cmp_ge_u32 s2, 256"); I("s_cbranch_scc1 L_end")
    if o.stamp: I("s_memrealtime s[96:97]")
    I("s_load_dwordx8 s[4:11], s[0:1], 0")
    I("s_load_dwordx2 s[12:13], s[0:1], 32")
    I("s_load_dwordx8 s[16:23], s[0:1], 40")
    I("s_load_dwordx2 s[24:25], s[0:1], 72")
    I("s_load_dwordx2 s[26:27], s[0:1], 96")
    I("v_lshrrev_b32 v1, 6, v0")
    I("v_and_b32 v0, 63, v0")
    I("v_readfirstlane_b32 s3, v1")
    I("s_and_b32 s41, s2, 7")
    I("s_lshr_b32 s42, s2, 3")
    I("s_lshr_b32 s38, s41, 2")
    I("s_and_b32 s39, s41, 3"); I("s_lshl_b32 s39, s39, 1")
    I("s_and_b32 s43, s42, 1"); I("s_or_b32 s39, s39, s43")
    I("s_lshr_b32 s40, s42, 1")
    for srd, size in ((44, 1376256), (48, 12582912), (52, 12582912), (56, 3670016), (60, 3670016), (64, 64 << 20)):
        I(f"s_mov_b32 s{srd+2}, {size}"); I(f"s_mov_b32 s{srd+3}, 0x20000")
    I("s_waitcnt lgkmcnt(0)")
    I("s_cmp_eq_u32 s38, 0")
    for srd, a, bb in ((44, 4, 16), (48, 6, 18), (52, 8, 20), (56, 10, 22), (60, 12, 24)):
        I(f"s_cselect_b32 s{srd}, s{a}, s{bb}"); I(f"s_cselect_b32 s{srd+1}, s{a+1}, s{bb+1}")
    I("s_mov_b32 s64, s26"); I("s_mov_b32 s65, s27")
    I("s_cmp_ge_u32 s3, 6"); I("s_cbranch_scc1 L_KL")
    I("s_cmp_ge_u32 s3, 4"); I("s_cbranch_scc1 L_RL")

SX, SK, SV, SWQ, SWO, SWS = "s[44:47]", "s[48:51]", "s[52:55]", "s[56:59]", "s[60:63]", "s[64:67]"

class Stamps:
    def __init__(self, b, o): self.b = b; self.o = o; self.n = 0
    def mark(self):
        if not self.o.stamp: return
        assert self.n < 13
        self.b.I(f"s_memtime s[{70+2*self.n}:{71+2*self.n}]")
        self.b.drain_lgk(force=True)
        self.n += 1
    def dump(self, dbg=False):
        if not self.o.stamp: return
        I = self.b.I
        I("s_memrealtime s[98:99]")
        I("s_waitcnt lgkmcnt(0)")
        I("s_lshl_b32 s4, s2, 3"); I("s_add_u32 s4, s4, s3"); I("s_lshl_b32 s4, s4, 6"); I(f"s_add_u32 s4, s4, {WS_STAMP}")
        I("v_mov_b32 v1, 0")
        for k in range(self.n):
            I(f"v_mov_b32 v2, s{70+2*k}")
            I(f"buffer_store_dword v2, v1, {SWS}, s4 offen offset:{4*k}")
        I("v_mov_b32 v2, s96"); I(f"buffer_store_dword v2, v1, {SWS}, s4 offen offset:56")
        I("v_mov_b32 v2, s98"); I(f"buffer_store_dword v2, v1, {SWS}, s4 offen offset:60")
        if self.o.dbg and dbg:
            I("s_load_dwordx2 s[8:9], s[0:1], 88"); I("s_mov_b32 s10, 256"); I("s_mov_b32 s11, 0x20000")
            I("s_waitcnt lgkmcnt(0)")
            I("s_add_u32 s8, s8, 512"); I("s_addc_u32 s9, s9, 0"); I("s_mov_b64 exec, 1")
            I("s_lshl_b32 s4, s2, 3"); I("s_add_u32 s4, s4, s3"); I("s_cmp_lg_u32 s4, 0"); I("s_cbranch_scc1 L_nodbg")
            for k in range(1, self.n):
                I(f"s_sub_u32 s5, s{70+2*k}, s{68+2*k}"); I("v_mov_b32 v2, s5")
                I(f"buffer_store_dword v2, v1, s[8:11], 0 offen offset:{4*(k-1)}")
            I("v_mov_b32 v2, s96"); I(f"buffer_store_dword v2, v1, s[8:11], 0 offen offset:40")
            self.b.label("L_nodbg")
            I("s_cmp_lg_u32 s3, 0"); I("s_cbranch_scc1 L_end")
            I("v_mov_b32 v2, s98"); I(f"buffer_atomic_umax v2, v1, s[8:11], 0 offen offset:44")

def interleave(b, mfmas, reads, first=2, per=1, pre=None):
    pass

def trbase(b, dst, tmp):
    I = b.I
    I(f"v_lshrrev_b32 v{dst}, 5, v0"); I(f"v_lshlrev_b32 v{dst}, 10, v{dst}")
    I(f"v_bfe_u32 v{tmp}, v0, 2, 3"); I(f"v_lshl_or_b32 v{dst}, v{tmp}, 7, v{dst}")
    I(f"v_bfe_u32 v{tmp}, v0, 3, 2"); I(f"v_lshl_or_b32 v{dst}, v{tmp}, 5, v{dst}")
    I(f"v_and_b32 v{tmp}, 3, v0"); I(f"v_lshl_or_b32 v{dst}, v{tmp}, 3, v{dst}")

def run_sched(b, mf, rd, first, per_gap):
    tok = {}
    ri = 0
    def emit_reads(n, idx):
        nonlocal ri
        k = 0
        while k < n and ri < len(rd) and rd[ri][2] <= idx:
            key, text, _ = rd[ri]
            tok[key] = b.I(text); ri += 1; k += 1
    emit_reads(first, 0)
    for i, (text, need) in enumerate(mf):
        for key in need:
            if key in tok: b.wait_lgk(tok[key])
            else:
                assert key is None or key not in [r[0] for r in rd], f"mfma {i} needs read {key} not yet issued"
        b.I(text)
        emit_reads(per_gap(i), i + 1)
    assert ri == len(rd), f"unissued reads {len(rd)-ri}"

MF = "v_mfma_f32_16x16x32_bf16"

def compute(b, o):
    I = b.I; st = Stamps(b, o)
    I("s_lshr_b32 s68, s3, 1"); I("s_and_b32 s69, s3, 1")
    ABUF = 8; BBUF = 40; QACC = 64
    qacc = lambda t, j: QACC + (t * 3 + j) * 4
    trbase(b, 1, 7)
    I("s_lshl_b32 s4, s68, 13")
    I("v_add_u32 v1, s4, v1")
    for j in (1, 2, 3): I(f"v_xor_b32 v{1+j}, {j<<5}, v1")
    I("v_bfe_u32 v5, v0, 3, 1"); I("v_lshlrev_b32 v5, 10, v5")
    I("v_and_b32 v7, 7, v0"); I("v_lshl_or_b32 v5, v7, 7, v5")
    I("v_lshrrev_b32 v7, 5, v0"); I("v_bfe_u32 v6, v0, 1, 2"); I("v_xor_b32 v7, v7, v6"); I("v_lshl_or_b32 v5, v7, 5, v5")
    I("v_bfe_u32 v7, v0, 4, 1"); I("v_lshl_or_b32 v5, v7, 4, v5")
    I("s_mul_i32 s4, s69, 6144"); I(f"s_add_u32 s4, s4, {XBUF}")
    I("v_add_u32 v5, s4, v5"); I("v_xor_b32 v6, 64, v5")
    for r in range(8, 256): I(f"v_mov_b32 v{r}, 0")
    I("s_mov_b32 s5, 12288")
    I("s_mov_b32 s6, 0")
    st.mark()
    def p1_stage(i, carried_only=False):
        u = i & 1; kp = i >> 1
        pu = (i - 1) & 1; pkp = ((i - 1) & 3) >> 1
        mf = []
        for f in (5, 6, 7):
            for j in range(3):
                a = qacc(8 * pu + f, j)
                mf.append((f"{MF} {vr(a)}, {vr(ABUF+4*f)}, {vr(BBUF+12*pkp+4*j)}, {vr(a)}", []))
        if carried_only:
            for t, _ in mf: I(t)
            return
        for f in range(5):
            for j in range(3):
                a = qacc(8 * u + f, j)
                mf.append((f"{MF} {vr(a)}, {vr(ABUF+4*f)}, {vr(BBUF+12*kp+4*j)}, {vr(a)}", [('A', f), ('B', j)]))
        rd = []
        def rdA(f):
            sg = f >> 2; j = f & 3
            mi = {5: 3, 6: 6, 7: 9}.get(f, 0)
            for e in range(2):
                rd.append((('A', f), f"ds_read_b64_tr_b16 {vr(ABUF+4*f+2*e,2)}, v{1+j} offset:{i*16384+sg*4096+e*2048}", mi))
        rdA(0)
        if u == 0:
            for j in range(3):
                rd.append((('B', j), f"ds_read_b128 {vr(BBUF+12*kp+4*j)}, v{5+kp} offset:{j*2048}", 0))
        for f in range(1, 8): rdA(f)
        I("s_barrier")
        run_sched(b, mf, rd, 2, lambda idx: (2 if idx % 3 == 0 else 1))
        b.drain_lgk()
    b.loop_begin("L_p1")
    for i in range(4):
        p1_stage(i)
        if i == 2:
            I("v_add_u32 v5, s5, v5"); I("v_add_u32 v6, s5, v6"); I("s_sub_u32 s5, 0, s5")
    I("s_add_u32 s6, s6, 1"); I("s_cmp_lt_u32 s6, 7")
    b.loop_end("s_cbranch_scc1 L_p1")
    I("s_barrier")
    p1_stage(0, carried_only=True)
    st.mark()
    QP = 40
    qp = lambda T, j: QP + (T * 3 + j) * 4
    for T in range(8):
        for j in range(3):
            d = qp(T, j); a0 = qacc(2 * T, j); a1 = qacc(2 * T + 1, j)
            I(f"v_cvt_pk_bf16_f32 v{d}, v{a0}, v{a0+1}"); I(f"v_cvt_pk_bf16_f32 v{d+1}, v{a0+2}, v{a0+3}")
            I(f"v_cvt_pk_bf16_f32 v{d+2}, v{a1}, v{a1+1}"); I(f"v_cvt_pk_bf16_f32 v{d+3}, v{a1+2}, v{a1+3}")
        for j in range(3):
            d = qp(T, j)
            I(f"v_permlane16_swap_b32 v{d}, v{d+2}"); I(f"v_permlane16_swap_b32 v{d+1}, v{d+3}")
    if o.dump == 'q':
        dump_regs(b, QP, 96)
    I("v_bfe_u32 v1, v0, 3, 1"); I("v_lshlrev_b32 v1, 10, v1")
    I("v_and_b32 v7, 7, v0"); I("v_lshl_or_b32 v1, v7, 7, v1")
    I("v_bfe_u32 v7, v0, 5, 1"); I("v_bfe_u32 v6, v0, 1, 1"); I("v_xor_b32 v7, v7, v6"); I("v_lshl_or_b32 v1, v7, 4, v1")
    I("v_bfe_u32 v7, v0, 4, 1"); I("v_lshl_or_b32 v1, v7, 5, v1")
    I("v_bfe_u32 v7, v0, 2, 1"); I("v_lshl_or_b32 v1, v7, 6, v1")
    I("s_mul_i32 s4, s68, 12288"); I(f"s_add_u32 s4, s4, {R}")
    I("v_add_u32 v1, s4, v1"); I("v_xor_b32 v2, 64, v1")
    I("v_add_u32 v3, 49152, v1"); I("v_add_u32 v4, 49152, v2")
    st.mark()
    SACC = 136; KBUF = 208
    sacc = lambda kt, j: SACC + (kt * 3 + j) * 4
    def krd(T, kt):
        dq = T >> 1; pos = (dq + 1) & 3
        off = pos * 24576 + kt * 2048
        reg = 1 + (T & 1)
        if off >= 49152: off -= 49152; reg += 2
        buf = KBUF + ((T & 1) * 6 + kt) * 4
        return f"ds_read_b128 {vr(buf)}, v{reg} offset:{off}"
    tok = {}
    for kt in range(6): tok[(0, kt)] = I(krd(0, kt))
    for T in range(8):
        if T == 4: I("s_barrier")
        for kt in range(6):
            b.wait_lgk(tok[(T, kt)])
            buf = KBUF + ((T & 1) * 6 + kt) * 4
            for j in range(3):
                a = sacc(kt, j)
                I(f"{MF} {vr(a)}, {vr(buf)}, {vr(qp(T,j))}, {'0' if T == 0 else vr(a)}")
                if j == 0 and T < 7: tok[(T + 1, kt)] = I(krd(T + 1, kt))
    b.drain_lgk()
    I("s_barrier")
    st.mark()
    PP = 208
    pp = lambda U, j: PP + (U * 3 + j) * 4
    I(f"s_mov_b32 s7, {hex(f32bits(math.log2(math.e) / 16.0))}")
    M = [8, 9, 10]; Tm = [11, 12, 13]; L = [14, 15, 16]
    vals = lambda j: [sacc(kt, j) + r for kt in range(6) for r in range(4)]
    for step in range(12):
        for j in range(3):
            v = vals(j)
            if step == 0: I(f"v_max3_f32 v{M[j]}, v{v[0]}, v{v[1]}, v{v[2]}")
            elif step < 11: I(f"v_max3_f32 v{M[j]}, v{M[j]}, v{v[2*step+1]}, v{v[2*step+2]}")
            else: I(f"v_max_f32 v{M[j]}, v{M[j]}, v{v[23]}")
    for sw in ("v_permlane16_swap_b32", "v_permlane32_swap_b32"):
        for j in range(3): I(f"v_mov_b32 v{Tm[j]}, v{M[j]}")
        for j in range(3): I(f"{sw} v{M[j]}, v{Tm[j]}")
        for j in range(3): I(f"v_max_f32 v{M[j]}, v{M[j]}, v{Tm[j]}")
    for j in range(3): I(f"v_mul_f32 v{M[j]}, s7, v{M[j]}")
    for k in range(24):
        for j in range(3):
            v = vals(j)[k]; I(f"v_fma_f32 v{v}, v{v}, s7, -v{M[j]}")
        for j in range(3):
            v = vals(j)[k]; I(f"v_exp_f32 v{v}, v{v}")
        if k >= 1:
            for j in range(3):
                v = vals(j)
                if k == 1: pass
                elif k == 2: I(f"v_add_f32 v{L[j]}, v{v[0]}, v{v[1]}")
                else: I(f"v_add_f32 v{L[j]}, v{L[j]}, v{v[k-1]}")
    for j in range(3): I(f"v_add_f32 v{L[j]}, v{L[j]}, v{vals(j)[23]}")
    for sw in ("v_permlane16_swap_b32", "v_permlane32_swap_b32"):
        for j in range(3): I(f"v_mov_b32 v{Tm[j]}, v{L[j]}")
        for j in range(3): I(f"{sw} v{L[j]}, v{Tm[j]}")
        for j in range(3): I(f"v_add_f32 v{L[j]}, v{L[j]}, v{Tm[j]}")
    for j in range(3): I(f"v_rcp_f32 v{L[j]}, v{L[j]}")
    for kt in range(6):
        for j in range(3):
            a = sacc(kt, j)
            for r in range(4): I(f"v_mul_f32 v{a+r}, v{a+r}, v{L[j]}")
            d = pp(kt >> 1, j) + (kt & 1) * 2
            I(f"v_cvt_pk_bf16_f32 v{d}, v{a}, v{a+1}"); I(f"v_cvt_pk_bf16_f32 v{d+1}, v{a+2}, v{a+3}")
    if o.dump == 'p':
        dump_regs(b, PP, 36)
    trbase(b, 1, 7)
    I("s_mul_i32 s4, s68, 49152"); I(f"s_add_u32 s4, s4, {R}")
    I("v_add_u32 v1, s4, v1")
    for j in (1, 2, 3): I(f"v_xor_b32 v{1+j}, {j<<5}, v1")
    st.mark()
    I("s_barrier")
    st.mark()
    VBUF = 8; NVB = 8; OACC = 136; OP = 40
    oacc = lambda t, j: OACC + ((t % 6) * 3 + j) * 4
    op = lambda kap, j: OP + (kap * 3 + j) * 4
    frs = [(t, U) for t in range(16) for U in range(3)]
    def vrd(n):
        t, U = frs[n]; dq = t >> 2; j = t & 3; buf = VBUF + (n % NVB) * 4
        I(f"ds_read_b64_tr_b16 {vr(buf,2)}, v{1+j} offset:{(dq*12+4*U)*1024}")
        return I(f"ds_read_b64_tr_b16 {vr(buf+2,2)}, v{1+j} offset:{(dq*12+4*U+2)*1024}")
    def ocvt(t):
        L_ = []
        for j in range(3):
            a = oacc(t, j); d = op(t >> 1, j) + (t & 1) * 2
            L_.append(f"v_cvt_pk_bf16_f32 v{d}, v{a}, v{a+1}"); L_.append(f"v_cvt_pk_bf16_f32 v{d+1}, v{a+2}, v{a+3}")
        return L_
    LA = 4
    tok = {}
    for n in range(LA): tok[n] = vrd(n)
    pend = []
    for n, (t, U) in enumerate(frs):
        b.wait_lgk(tok[n])
        buf = VBUF + (n % NVB) * 4
        for j in range(3):
            a = oacc(t, j)
            I(f"{MF} {vr(a)}, {vr(buf)}, {vr(pp(U,j))}, {'0' if U == 0 else vr(a)}")
            if j == 0 and n + LA < len(frs): tok[n + LA] = vrd(n + LA)
            if j >= 1 and U >= 1:
                for _ in range(2 if j == 1 else 1):
                    if pend: I(pend.pop(0))
        if U == 2: pend += ocvt(t)
    for x in pend: I(x)
    b.drain_lgk()
    I("v_lshlrev_b32 v5, 4, v0")
    I("s_mul_i32 s4, s68, 49152"); I("s_mul_i32 s5, s69, 3072"); I("s_add_u32 s4, s4, s5"); I(f"s_add_u32 s4, s4, {R}")
    I("v_add_u32 v5, s4, v5")
    st.mark()
    I("s_barrier")
    zs = list(range(136, 256))
    for kap in range(8):
        for j in range(3):
            I(f"ds_write_b128 v5, {vr(op(kap,j))} offset:{kap*6144+j*1024}")
            for _ in range(5):
                if zs: I(f"v_mov_b32 v{zs.pop(0)}, 0")
    trbase(b, 6, 7)
    I("s_lshl_b32 s4, s3, 12")
    I("v_add_u32 v1, s4, v6")
    for j in (1, 2, 3): I(f"v_xor_b32 v{1+j}, {j<<5}, v1")
    for m in range(3):
        I("s_mul_i32 s4, s3, 3"); I(f"s_add_u32 s4, s4, {m}")
        I("s_and_b32 s5, s4, 3"); I("s_lshl_b32 s5, s5, 5")
        I("s_lshr_b32 s4, s4, 2"); I("s_lshl_b32 s4, s4, 12")
        I(f"v_xor_b32 v{36+m}, s5, v6"); I(f"v_add_u32 v{36+m}, s4, v{36+m}")
    b.drain_lgk()
    I("v_lshlrev_b32 v5, 4, v0"); I(f"v_add_u32 v5, {R}, v5")
    for r in list(range(88, 136)) + list(range(8, 36)) + list(range(64, 88)): I(f"v_mov_b32 v{r}, 0")
    I("s_mov_b32 s6, 0")
    st.mark()
    A4 = 8; B4 = 40; ACC4 = 88
    acc4 = lambda m, q: ACC4 + (m * 6 + q) * 4
    def p4_stage(i, carried_only=False):
        u = i & 1; kp = i >> 1
        pkp = ((i - 1) & 3) >> 1
        carried = (5, 6) if u == 0 else (2, 3)
        ckp = pkp
        mine = (0, 1) if u == 0 else (4,)
        allf = (0, 1, 2, 3) if u == 0 else (4, 5, 6)
        mf = []
        for f in carried:
            for q in range(6):
                a = acc4(f, q)
                mf.append((f"{MF} {vr(a)}, {vr(A4+4*f)}, {vr(B4+24*ckp+4*q)}, {vr(a)}", []))
        if carried_only:
            for t, _ in mf: I(t)
            return
        for f in mine:
            for q in range(6):
                a = acc4(f, q)
                mf.append((f"{MF} {vr(a)}, {vr(A4+4*f)}, {vr(B4+24*kp+4*q)}, {vr(a)}", [('A', f), ('B', q)]))
        rd = []
        def rdA(f):
            areg = 1 + f if f < 4 else 36 + f - 4
            for e in range(2):
                rd.append((('A', f), f"ds_read_b64_tr_b16 {vr(A4+4*f+2*e,2)}, v{areg} offset:{i*16384+e*2048}", 0))
        rdA(allf[0])
        if u == 0:
            for q in range(6):
                rd.append((('B', q), f"ds_read_b128 {vr(B4+24*kp+4*q)}, v5 offset:{kp*6144+q*1024}", 0))
        for f in allf[1:]: rdA(f)
        I("s_barrier")
        run_sched(b, mf, rd, 2, lambda idx: 1)
        b.drain_lgk()
    b.loop_begin("L_p4")
    for i in range(4):
        p4_stage(i)
        if i == 2: I("v_add_u32 v5, 12288, v5")
    I("s_add_u32 s6, s6, 1"); I("s_cmp_lt_u32 s6, 8")
    b.loop_end("s_cbranch_scc1 L_p4")
    p4_stage(0, carried_only=True)
    st.mark()
    I("v_lshlrev_b32 v5, 4, v0")
    I("s_lshl_b32 s4, s38, 4"); I("s_add_u32 s4, s4, s40"); I("s_lshl_b32 s4, s4, 3"); I("s_add_u32 s4, s4, s39")
    I(f"s_mul_i32 s4, s4, {PART}")
    I(f"s_mul_i32 s5, s3, {4*3072}"); I("s_add_u32 s5, s5, s4")
    I(f"s_mul_i32 s7, s3, {3*3072}"); I("s_add_u32 s7, s7, s4"); I(f"s_add_u32 s7, s7, {16*3072}")
    k = 0
    for m in range(7):
        if m == 4: I("s_mov_b32 s5, s7")
        for jp in range(3):
            d = 40 + (k % 12) * 4; k += 1
            a0 = acc4(m, 2 * jp); a1 = acc4(m, 2 * jp + 1)
            I(f"v_cvt_pk_bf16_f32 v{d}, v{a0}, v{a0+1}"); I(f"v_cvt_pk_bf16_f32 v{d+1}, v{a0+2}, v{a0+3}")
            I(f"v_cvt_pk_bf16_f32 v{d+2}, v{a1}, v{a1+1}"); I(f"v_cvt_pk_bf16_f32 v{d+3}, v{a1+2}, v{a1+3}")
            if k == 13: I("s_waitcnt vmcnt(6)")
            I(f"buffer_store_dwordx4 {vr(d)}, v5, {SWS}, s5 offen offset:{jp*1024} {o.stflags}")
        I("s_add_u32 s5, s5, 3072")
    if o.stamp:
        I("s_waitcnt vmcnt(0)")
    st.mark()
    st.dump(True)
    I("s_endpgm")

def dump_regs(b, base, n):
    I = b.I
    I("s_lshl_b32 s4, s2, 2"); I("s_add_u32 s4, s4, s3"); I(f"s_mul_i32 s4, s4, {n*256}"); I(f"s_add_u32 s4, s4, {40<<20}")
    I("v_lshlrev_b32 v7, 2, v0")
    for r in range(n):
        I(f"buffer_store_dword v{base+r}, v7, {SWS}, s4 offen")
        I("s_add_u32 s4, s4, 256")
    I("s_waitcnt vmcnt(0)")

import struct
def f32bits(x): return struct.unpack("<I", struct.pack("<f", x))[0]

def src_pattern(b, dst, tmp, tmp2, pitch, kind):
    I = b.I
    if kind == 'wq':
        I(f"v_bfe_u32 v{tmp}, v0, 3, 2"); I(f"v_bfe_u32 v{tmp2}, v0, 5, 1"); I(f"v_lshl_or_b32 v{tmp}, v{tmp2}, 3, v{tmp}")
    else:
        I(f"v_lshrrev_b32 v{tmp}, 3, v0")
    I(f"v_mul_u32_u24 v{dst}, {pitch}, v{tmp}")
    if kind == 'k':
        I(f"v_bfe_u32 v{tmp}, v0, 4, 1"); I(f"v_bfe_u32 v{tmp2}, v0, 5, 1"); I(f"v_lshl_or_b32 v{tmp}, v{tmp2}, 2, v{tmp}")
    else:
        I(f"v_bfe_u32 v{tmp}, v0, 4, 2"); I(f"v_lshlrev_b32 v{tmp}, 1, v{tmp}")
    I(f"v_and_b32 v{tmp2}, 7, v0"); I(f"v_xor_b32 v{tmp}, v{tmp}, v{tmp2}")
    I(f"v_lshl_add_u32 v{dst}, v{tmp}, 4, v{dst}")

def ring_loader(b, o):
    I = b.I; st = Stamps(b, o)
    b.raw("@fence"); b.label("L_RL")
    I("s_sub_u32 s68, s3, 4")
    src_pattern(b, 1, 10, 11, 8192, 'wq')
    for i, ro in enumerate((0, 16, 4, 20)):
        if i: I(f"v_add_u32 v{1+i}, {ro*8192 - i*1024}, v1")
    src_pattern(b, 5, 10, 11, 896, 'w')
    for i in (1, 2, 3): I(f"v_add_u32 v{5+i}, {i*6144}, v5")
    I("s_lshl_b32 s4, s39, 10"); I("s_lshl_b32 s5, s68, 9"); I("s_add_u32 s4, s4, s5")
    I("s_lshl_b32 s8, s68, 13")
    I("s_mul_i32 s9, s40, 86016"); I(f"s_mul_i32 s5, s68, {6*7168}"); I("s_add_u32 s9, s9, s5")
    I("s_mul_i32 s10, s68, 6144"); I(f"s_add_u32 s10, s10, {XBUF}")
    I("s_mov_b32 s11, 12288")
    I(f"s_mul_i32 s12, s39, {512*896}")
    I("s_lshl_b32 s13, s68, 8")
    I(f"s_mul_i32 s15, s68, {2*8*896}")
    I("s_lshl_b32 s16, s68, 11")
    q = []
    def G_wq(slot, u, adv):
        for sg in range(2):
            I(f"s_add_u32 m0, s8, {slot*16384 + sg*4096}")
            I(f"s_add_u32 s5, s4, {u*256 + sg*128}")
            for i in range(4):
                I(f"buffer_load_dwordx4 v{1+i}, {SWQ}, s5 offen offset:{i*1024} lds")
        if adv: I(f"s_add_u32 s4, s4, {32*8192}")
        q.append(8)
    def X():
        I("s_mov_b32 m0, s10")
        for i in range(4): I(f"buffer_load_dwordx4 v{5+i}, {SX}, s9 offen offset:{i*1024} lds")
        I("s_add_u32 m0, s10, 4096"); I(f"s_add_u32 s5, s9, {4*7168}")
        for i in range(2): I(f"buffer_load_dwordx4 v{5+i}, {SX}, s5 offen offset:{i*1024} lds")
        I("s_add_u32 s9, s9, 128"); I("s_add_u32 s10, s10, s11"); I("s_sub_u32 s11, 0, s11")
    def G_wo(slot, u):
        if u == 0:
            for sg in range(2):
                I(f"s_add_u32 m0, s8, {slot*16384 + sg*4096}")
                I("s_add_u32 s5, s12, s13")
                if sg: I("s_add_u32 s5, s5, 128")
                for i in range(4):
                    I(f"buffer_load_dwordx4 v{5+i}, {SWO}, s5 offen offset:{i*1024} lds")
        else:
            I(f"s_add_u32 m0, s8, {slot*16384}")
            I("s_add_u32 s5, s12, s13"); I("s_add_u32 s5, s5, 512")
            for i in range(4):
                I(f"buffer_load_dwordx4 v{5+i}, {SWO}, s5 offen offset:{i*1024} lds")
            I(f"s_add_u32 m0, s16, {slot*16384 + 4096}")
            I("s_add_u32 s5, s12, s15"); I(f"s_add_u32 s5, s5, {512+128}")
            for i in range(2):
                I(f"buffer_load_dwordx4 v{5+i}, {SWO}, s5 offen offset:{i*1024} lds")
            I(f"s_add_u32 s12, s12, {32*896}")
    st.mark()
    X(); G_wq(0, 0, False); G_wq(1, 1, True); G_wq(2, 0, False)
    I("s_mov_b32 s6, 0")
    b.loop_begin("L_rl1")
    I("s_waitcnt vmcnt(16)"); I("s_barrier"); X(); G_wq(3, 1, True)
    I("s_waitcnt vmcnt(22)"); I("s_barrier"); G_wq(0, 0, False)
    I("s_waitcnt vmcnt(22)"); I("s_barrier"); G_wq(1, 1, True)
    I("s_waitcnt vmcnt(16)"); I("s_barrier"); G_wq(2, 0, False)
    I("s_add_u32 s6, s6, 1"); I("s_cmp_lt_u32 s6, 6")
    b.loop_end("s_cbranch_scc1 L_rl1")
    I("s_waitcnt vmcnt(16)"); I("s_barrier"); G_wq(3, 1, True)
    I("s_waitcnt vmcnt(16)"); I("s_barrier"); G_wo(0, 0)
    I("s_waitcnt vmcnt(16)"); I("s_barrier"); G_wo(1, 1)
    I("s_waitcnt vmcnt(14)"); I("s_barrier"); G_wo(2, 0)
    st.mark()
    I("s_barrier"); G_wo(3, 1)
    I("s_barrier")
    I("s_barrier")
    I("s_barrier")
    I("s_barrier")
    st.mark()
    I("s_waitcnt vmcnt(20)"); I("s_barrier")
    I("s_mov_b32 s6, 0")
    b.loop_begin("L_rl4")
    I("s_waitcnt vmcnt(14)"); I("s_barrier"); G_wo(0, 0)
    I("s_waitcnt vmcnt(14)"); I("s_barrier"); G_wo(1, 1)
    I("s_waitcnt vmcnt(14)"); I("s_barrier"); G_wo(2, 0)
    I("s_waitcnt vmcnt(14)"); I("s_barrier"); G_wo(3, 1)
    I("s_add_u32 s6, s6, 1"); I("s_cmp_lt_u32 s6, 7")
    b.loop_end("s_cbranch_scc1 L_rl4")
    I("s_waitcnt vmcnt(14)"); I("s_barrier")
    I("s_waitcnt vmcnt(6)"); I("s_barrier")
    I("s_waitcnt vmcnt(0)"); I("s_barrier")
    st.mark()
    st.dump()
    I("s_endpgm")

def kv_loader(b, o):
    I = b.I; st = Stamps(b, o)
    b.raw("@fence"); b.label("L_KL")
    I("s_sub_u32 s68, s3, 6")
    src_pattern(b, 1, 10, 11, 512, 'k')
    for i in (1, 2, 3): I(f"v_add_u32 v{1+i}, {i*3072}, v1")
    src_pattern(b, 5, 10, 11, 512, 'w')
    I("s_lshl_b32 s4, s40, 4"); I("s_lshl_b32 s5, s39, 1"); I("s_add_u32 s4, s4, s5"); I("s_add_u32 s4, s4, s68")
    I("s_mul_i32 s4, s4, 49152")
    if o.kvsame: I("s_mul_i32 s4, s68, 49152")
    I("s_mul_i32 s8, s68, 12288"); I(f"s_add_u32 s8, s8, {R}")
    KD = 16; VR = 64
    nt = " nt" if o.kvnt else ""
    loads = []
    for kg in range(3):
        for dq in range(3):
            for i in range(4):
                pre = []
                if i == 0:
                    pre = [f"s_add_u32 m0, s8, {(dq+1)*24576 + kg*4096}", f"s_add_u32 s5, s4, {kg*16384 + dq*128}"]
                loads.append(pre + [f"buffer_load_dwordx4 v{1+i}, {SK}, s5 offen offset:{i*1024}{nt} lds"])
        for i in range(4):
            ko = kg * 4 + i
            loads.append([f"s_add_u32 s7, s4, {ko*4096}", f"buffer_load_dwordx4 {vr(KD+4*ko)}, v1, {SK}, s7 offen offset:384{nt}"])
    for ko in range(12):
        for dq in range(4):
            pre = [f"s_add_u32 s7, s4, {ko*4096}"] if dq == 0 else []
            loads.append(pre + [f"buffer_load_dwordx4 {vr(VR+4*(dq*12+ko))}, v5, {SV}, s7 offen offset:{dq*128}{nt}"])
    li = 0
    def issue(n):
        nonlocal li
        for _ in range(n):
            if li < len(loads):
                for t in loads[li]: I(t)
                li += 1
    st.mark()
    if o.warm:
        warmup(b, o)
    issue(o.kpre)
    for n in range(28):
        I("s_barrier")
        issue(o.kfirst if n == 0 else o.kper)
    st.mark()
    issue(len(loads))
    assert li == len(loads), li
    I("v_lshlrev_b32 v6, 4, v0"); I("v_add_u32 v7, s8, v6")
    I("s_mul_i32 s5, s68, 49152"); I(f"s_add_u32 s5, s5, {R}"); I("v_add_u32 v8, s5, v6")
    I("s_waitcnt vmcnt(48)")
    st.mark()
    I("s_barrier")
    for ko in range(12): I(f"ds_write_b128 v7, {vr(KD+4*ko)} offset:{ko*1024}")
    b.drain_lgk()
    I("s_barrier")
    I("s_barrier")
    st.mark()
    for ko in range(12):
        I(f"s_waitcnt vmcnt({44-4*ko})")
        for dq in range(4):
            I(f"ds_write_b128 v8, {vr(VR+4*(dq*12+ko))} offset:{(dq*12+ko)*1024}")
    b.drain_lgk()
    st.mark()
    I("s_barrier")
    st.dump()
    I("s_endpgm")

def warmup(b, o):
    I = b.I
    I("v_lshlrev_b32 v9, 7, v0")
    I("s_lshl_b32 s5, s43, 1"); I("s_add_u32 s5, s5, s68"); I(f"s_mul_i32 s5, s5, {168*128}")
    I("s_mul_i32 s7, s40, 86016"); I("s_add_u32 s5, s5, s7")
    for i in range(3):
        I(f"buffer_load_dword v{12}, v9, {SX}, s5 offen")
        I("s_add_u32 s5, s5, 8192")
    I("v_lshrrev_b32 v13, 3, v0"); I("v_lshlrev_b32 v13, 13, v13"); I("v_and_b32 v14, 7, v0"); I("v_lshl_or_b32 v13, v14, 7, v13")
    I("s_mul_i32 s5, s40, 28"); I("s_mul_i32 s7, s68, 14"); I("s_add_u32 s5, s5, s7"); I("s_lshl_b32 s5, s5, 13")
    I("s_lshl_b32 s7, s39, 10"); I("s_add_u32 s5, s5, s7")
    for i in range(2):
        I(f"buffer_load_dword v{12}, v13, {SWQ}, s5 offen")
        I("s_add_u32 s5, s5, 65536")
    I(f"s_mul_i32 s5, s39, {512*896}"); I("s_mul_i32 s7, s40, 28672"); I("s_add_u32 s5, s5, s7")
    I("s_mul_i32 s7, s68, 14336"); I("s_add_u32 s5, s5, s7")
    for i in range(2):
        I(f"buffer_load_dword v{12}, v9, {SWO}, s5 offen")
        I("s_add_u32 s5, s5, 8192")

def reduce_kernel(b, o):
    I = b.I
    b.raw("@fence")
    b.raw(".p2align 8"); b.raw(".type red_kernel,@function"); b.label("red_kernel")
    I("s_cmp_ge_u32 s2, 336"); I("s_cbranch_scc1 L_rend")
    if o.stamp: I("s_memrealtime s[24:25]")
    I("s_load_dwordx2 s[4:5], s[0:1], 80")
    I("s_load_dwordx2 s[8:9], s[0:1], 96")
    I("v_lshrrev_b32 v1, 6, v0"); I("v_and_b32 v0, 63, v0"); I("v_readfirstlane_b32 s3, v1")
    I("s_lshl_b32 s12, s2, 2"); I("s_add_u32 s12, s12, s3")
    I(f"s_mov_b32 s13, {(2**32 + 13)//14 + 0}")
    I("s_mul_hi_u32 s14, s12, s13")
    I("s_mul_i32 s15, s14, 14"); I("s_sub_u32 s15, s12, s15")
    I(f"s_mov_b32 s13, {(2**32 + 2)//3}")
    I("s_mul_hi_u32 s16, s14, s13")
    I("s_mul_i32 s17, s16, 3"); I("s_sub_u32 s17, s14, s17")
    I("s_mov_b32 s6, 2752512"); I("s_mov_b32 s7, 0x20000")
    I(f"s_mov_b32 s10, {256*PART}"); I("s_mov_b32 s11, 0x20000")
    I(f"s_mul_i32 s18, s16, {8*PART}"); I("s_mul_i32 s19, s15, 6144"); I("s_add_u32 s18, s18, s19")
    I("s_lshl_b32 s19, s17, 10"); I("s_add_u32 s18, s18, s19")
    I("v_lshlrev_b32 v2, 4, v0")
    I("s_waitcnt lgkmcnt(0)")
    for p in range(8):
        I(f"buffer_load_dwordx4 {vr(8+8*p)}, v2, s[8:11], s18 offen {o.ldflags}")
        I(f"buffer_load_dwordx4 {vr(12+8*p)}, v2, s[8:11], s18 offen offset:3072 {o.ldflags}")
        I(f"s_add_u32 s18, s18, {PART}")
    I("s_and_b32 s19, s16, 15"); I("s_mul_i32 s19, s19, 96"); I("s_lshl_b32 s20, s17, 5"); I("s_add_u32 s19, s19, s20")
    I("s_mul_i32 s19, s19, 1792")
    I("s_lshr_b32 s20, s16, 4"); I("s_mul_i32 s20, s20, 896"); I("s_add_u32 s19, s19, s20")
    I("s_lshl_b32 s20, s15, 6"); I("s_add_u32 s19, s19, s20")
    I("s_add_u32 s21, s19, 28672")
    I("v_and_b32 v3, 15, v0"); I("v_mul_u32_u24 v3, 1792, v3")
    I("v_bfe_u32 v4, v0, 5, 1"); I("v_lshl_add_u32 v3, v4, 4, v3")
    I("v_bfe_u32 v4, v0, 4, 1"); I("v_lshl_add_u32 v3, v4, 5, v3")
    I("s_mov_b32 s22, 0xffff0000")
    AC = 72
    for p in range(8):
        I(f"s_waitcnt vmcnt({14-2*p})")
        for r in range(8):
            src = 8 + 8 * p + r
            if p == 0:
                I(f"v_lshlrev_b32 v{AC+2*r}, 16, v{src}"); I(f"v_and_b32 v{AC+2*r+1}, s22, v{src}")
            else:
                I(f"v_lshlrev_b32 v5, 16, v{src}"); I(f"v_and_b32 v6, s22, v{src}")
                I(f"v_add_f32 v{AC+2*r}, v{AC+2*r}, v5"); I(f"v_add_f32 v{AC+2*r+1}, v{AC+2*r+1}, v6")
    for h in range(2):
        d = 8 + 4 * h
        for k, r in enumerate((2 * h, 2 * h + 1, 4 + 2 * h, 5 + 2 * h)):
            I(f"v_cvt_pk_bf16_f32 v{d+k}, v{AC+2*r}, v{AC+2*r+1}")
    for h in range(2):
        d = 8 + 4 * h
        I(f"v_permlane16_swap_b32 v{d}, v{d+2}"); I(f"v_permlane16_swap_b32 v{d+1}, v{d+3}")
    I("buffer_store_dwordx4 v[8:11], v3, s[4:7], s19 offen")
    I("buffer_store_dwordx4 v[12:15], v3, s[4:7], s21 offen")
    if o.stamp and not o.spin:
        I("s_waitcnt vmcnt(0)"); I("s_memrealtime s[26:27]"); I("s_waitcnt lgkmcnt(0)")
        I("s_mov_b32 s10, 0x4000000")
        I("s_lshl_b32 s12, s12, 3"); I(f"s_add_u32 s12, s12, {WS_STAMP + 131072}")
        I("v_mov_b32 v1, 0"); I("v_mov_b32 v2, s24"); I("v_mov_b32 v3, s26")
        I("buffer_store_dwordx2 v[2:3], v1, s[8:11], s12 offen")
        if o.dbg:
            I("s_load_dwordx2 s[8:9], s[0:1], 88"); I("s_mov_b32 s10, 256")
            I("s_waitcnt lgkmcnt(0)")
            I("s_mov_b64 exec, 1")
            I("s_cmp_lg_u32 s3, 0"); I("s_cbranch_scc1 L_rend")
            I("v_sub_u32 v2, 0, v2")
            I("buffer_atomic_umax v2, v1, s[8:11], 0 offen offset:48")
            I("buffer_atomic_umax v3, v1, s[8:11], 0 offen offset:52")
    if o.spin:
        I("s_cmp_lg_u32 s12, 0"); I("s_cbranch_scc1 L_rend")
        I(f"s_add_u32 s8, s8, {WS_STAMP}"); I("s_addc_u32 s9, s9, 0")
        I("s_load_dword s28, s[8:9], 56"); I("s_waitcnt lgkmcnt(0)")
        b.label("L_spin")
        I("s_memrealtime s[26:27]"); I("s_waitcnt lgkmcnt(0)")
        I("s_sub_u32 s26, s26, s28"); I(f"s_cmp_lt_u32 s26, {o.spin}"); I("s_cbranch_scc1 L_spin")
    b.label("L_rend")
    I("s_endpgm")

def kd(name, nv, ns):
    return f""".amdhsa_kernel {name}
  .amdhsa_next_free_vgpr {nv}
  .amdhsa_next_free_sgpr {ns}
  .amdhsa_accum_offset {(nv+3)//4*4}
  .amdhsa_group_segment_fixed_size 0
  .amdhsa_kernarg_size 104
  .amdhsa_user_sgpr_count 2
  .amdhsa_user_sgpr_kernarg_segment_ptr 1
  .amdhsa_system_sgpr_workgroup_id_x 1
.end_amdhsa_kernel
"""

def gen(o):
    b = Builder()
    hdr = f"""; fused attention block: K1 = Qproj+attn+Oproj partials (2 heads / WG), K2 = reduce over head pairs
; @launch kernel={NAME}_kernel grid=(256,1,1) block=(512,1,1) lds=163840
; @launch kernel=red_kernel grid=(336,1,1) block=(256,1,1) lds=0
.amdgcn_target "amdgcn-amd-amdhsa--gfx950"
.text
.globl {NAME}_kernel
.p2align 8
.type {NAME}_kernel,@function
"""
    b.label(f"{NAME}_kernel")
    prologue(b, o)
    compute(b, o)
    ring_loader(b, o)
    kv_loader(b, o)
    b.label("L_end"); b.I("s_endpgm")
    reduce_kernel(b, o)
    tail = '.section .rodata,"a"\n.p2align 6\n' + kd(f"{NAME}_kernel", 256, 100) + ".p2align 6\n" + kd("red_kernel", 88, 32)
    if o.nored: hdr = hdr.replace("; @launch kernel=red_kernel grid=(336,1,1) block=(256,1,1) lds=0\n", "")
    return hdr + b.text() + tail

if __name__ == "__main__":
    ap = argparse.ArgumentParser()
    ap.add_argument("-o", default="cdna_kernels/" + NAME + ".s")
    ap.add_argument("--stamp", action="store_true")
    ap.add_argument("--dump", default="")
    ap.add_argument("--kvnt", type=int, default=0)
    ap.add_argument("--warm", type=int, default=1)
    ap.add_argument("--kpre", type=int, default=0)
    ap.add_argument("--kfirst", type=int, default=24)
    ap.add_argument("--kper", type=int, default=3)
    ap.add_argument("--kvsame", type=int, default=0)
    ap.add_argument("--dbg", type=int, default=0)
    ap.add_argument("--nored", type=int, default=0)
    ap.add_argument("--spin", type=int, default=0)
    ap.add_argument("--stflags", default="")
    ap.add_argument("--ldflags", default="")
    o = ap.parse_args()
    open(o.o, "w").write(gen(o))
```

```python
import sys, math, argparse
from asmb import Builder
NAME = "concat_heads__mha_block_cached__gqa_block_cached__near_ridge"

R = 65536; XBUF = 65536
WS_STAMP = 32 << 20
PART = 86016

class Opt: pass

def vr(a, n=4): return f"v[{a}:{a+n-1}]"

def prologue(b, o):
    I = b.I
    I("s_cmp_ge_u32 s2, 256"); I("s_cbranch_scc1 L_end")
    if o.stamp: I("s_memrealtime s[96:97]")
    I("s_load_dwordx8 s[4:11], s[0:1], 0")
    I("s_load_dwordx2 s[12:13], s[0:1], 32")
    I("s_load_dwordx8 s[16:23], s[0:1], 40")
    I("s_load_dwordx2 s[24:25], s[0:1], 72")
    I("s_load_dwordx2 s[26:27], s[0:1], 96")
    I("v_lshrrev_b32 v1, 6, v0")
    I("v_and_b32 v0, 63, v0")
    I("v_readfirstlane_b32 s3, v1")
    I("s_and_b32 s41, s2, 7")
    I("s_lshr_b32 s42, s2, 3")
    I("s_lshr_b32 s38, s41, 2")
    I("s_and_b32 s39, s41, 3"); I("s_lshl_b32 s39, s39, 1")
    I("s_and_b32 s43, s42, 1"); I("s_or_b32 s39, s39, s43")
    I("s_lshr_b32 s40, s42, 1")
    for srd, size in ((44, 1376256), (48, 12582912), (52, 12582912), (56, 3670016), (60, 3670016), (64, 64 << 20)):
        I(f"s_mov_b32 s{srd+2}, {size}"); I(f"s_mov_b32 s{srd+3}, 0x20000")
    I("s_waitcnt lgkmcnt(0)")
    I("s_cmp_eq_u32 s38, 0")
    for srd, a, bb in ((44, 4, 16), (48, 6, 18), (52, 8, 20), (56, 10, 22), (60, 12, 24)):
        I(f"s_cselect_b32 s{srd}, s{a}, s{bb}"); I(f"s_cselect_b32 s{srd+1}, s{a+1}, s{bb+1}")
    I("s_mov_b32 s64, s26"); I("s_mov_b32 s65, s27")
    I("s_cmp_ge_u32 s3, 6"); I("s_cbranch_scc1 L_KL")
    I("s_cmp_ge_u32 s3, 4"); I("s_cbranch_scc1 L_RL")

SX, SK, SV, SWQ, SWO, SWS = "s[44:47]", "s[48:51]", "s[52:55]", "s[56:59]", "s[60:63]", "s[64:67]"

class Stamps:
    def __init__(self, b, o): self.b = b; self.o = o; self.n = 0
    def mark(self):
        if not self.o.stamp: return
        assert self.n < 13
        self.b.I(f"s_memtime s[{70+2*self.n}:{71+2*self.n}]")
        self.b.drain_lgk(force=True)
        self.n += 1
    def dump(self, dbg=False):
        if not self.o.stamp: return
        I = self.b.I
        I("s_memrealtime s[98:99]")
        I("s_waitcnt lgkmcnt(0)")
        I("s_lshl_b32 s4, s2, 3"); I("s_add_u32 s4, s4, s3"); I("s_lshl_b32 s4, s4, 6"); I(f"s_add_u32 s4, s4, {WS_STAMP}")
        I("v_mov_b32 v1, 0")
        for k in range(self.n):
            I(f"v_mov_b32 v2, s{70+2*k}")
            I(f"buffer_store_dword v2, v1, {SWS}, s4 offen offset:{4*k}")
        I("v_mov_b32 v2, s96"); I(f"buffer_store_dword v2, v1, {SWS}, s4 offen offset:56")
        I("v_mov_b32 v2, s98"); I(f"buffer_store_dword v2, v1, {SWS}, s4 offen offset:60")
        if self.o.dbg and dbg:
            I("s_load_dwordx2 s[8:9], s[0:1], 88"); I("s_mov_b32 s10, 256"); I("s_mov_b32 s11, 0x20000")
            I("s_waitcnt lgkmcnt(0)")
            I("s_add_u32 s8, s8, 512"); I("s_addc_u32 s9, s9, 0"); I("s_mov_b64 exec, 1")
            I("s_lshl_b32 s4, s2, 3"); I("s_add_u32 s4, s4, s3"); I("s_cmp_lg_u32 s4, 0"); I("s_cbranch_scc1 L_nodbg")
            for k in range(1, self.n):
                I(f"s_sub_u32 s5, s{70+2*k}, s{68+2*k}"); I("v_mov_b32 v2, s5")
                I(f"buffer_store_dword v2, v1, s[8:11], 0 offen offset:{4*(k-1)}")
            I("v_mov_b32 v2, s96"); I(f"buffer_store_dword v2, v1, s[8:11], 0 offen offset:40")
            self.b.label("L_nodbg")
            I("s_cmp_lg_u32 s3, 0"); I("s_cbranch_scc1 L_end")
            I("v_mov_b32 v2, s98"); I(f"buffer_atomic_umax v2, v1, s[8:11], 0 offen offset:44")

def interleave(b, mfmas, reads, first=2, per=1, pre=None):
    pass

def trbase(b, dst, tmp):
    I = b.I
    I(f"v_lshrrev_b32 v{dst}, 5, v0"); I(f"v_lshlrev_b32 v{dst}, 10, v{dst}")
    I(f"v_bfe_u32 v{tmp}, v0, 2, 3"); I(f"v_lshl_or_b32 v{dst}, v{tmp}, 7, v{dst}")
    I(f"v_bfe_u32 v{tmp}, v0, 3, 2"); I(f"v_lshl_or_b32 v{dst}, v{tmp}, 5, v{dst}")
    I(f"v_and_b32 v{tmp}, 3, v0"); I(f"v_lshl_or_b32 v{dst}, v{tmp}, 3, v{dst}")

def run_sched(b, mf, rd, first, per_gap):
    tok = {}
    ri = 0
    def emit_reads(n, idx):
        nonlocal ri
        k = 0
        while k < n and ri < len(rd) and rd[ri][2] <= idx:
            key, text, _ = rd[ri]
            tok[key] = b.I(text); ri += 1; k += 1
    emit_reads(first, 0)
    for i, (text, need) in enumerate(mf):
        for key in need:
            if key in tok: b.wait_lgk(tok[key])
            else:
                assert key is None or key not in [r[0] for r in rd], f"mfma {i} needs read {key} not yet issued"
        b.I(text)
        emit_reads(per_gap(i), i + 1)
    assert ri == len(rd), f"unissued reads {len(rd)-ri}"

MF = "v_mfma_f32_16x16x32_bf16"

def compute(b, o):
    I = b.I; st = Stamps(b, o)
    I("s_lshr_b32 s68, s3, 1"); I("s_and_b32 s69, s3, 1")
    ABUF = 8; BBUF = 40; QACC = 64
    qacc = lambda t, j: QACC + (t * 3 + j) * 4
    trbase(b, 1, 7)
    I("s_lshl_b32 s4, s68, 13")
    I("v_add_u32 v1, s4, v1")
    for j in (1, 2, 3): I(f"v_xor_b32 v{1+j}, {j<<5}, v1")
    I("v_bfe_u32 v5, v0, 3, 1"); I("v_lshlrev_b32 v5, 10, v5")
    I("v_and_b32 v7, 7, v0"); I("v_lshl_or_b32 v5, v7, 7, v5")
    I("v_lshrrev_b32 v7, 5, v0"); I("v_bfe_u32 v6, v0, 1, 2"); I("v_xor_b32 v7, v7, v6"); I("v_lshl_or_b32 v5, v7, 5, v5")
    I("v_bfe_u32 v7, v0, 4, 1"); I("v_lshl_or_b32 v5, v7, 4, v5")
    I("s_mul_i32 s4, s69, 6144"); I(f"s_add_u32 s4, s4, {XBUF}")
    I("v_add_u32 v5, s4, v5"); I("v_xor_b32 v6, 64, v5")
    for r in range(8, 256): I(f"v_mov_b32 v{r}, 0")
    I("s_mov_b32 s5, 12288")
    I("s_mov_b32 s6, 0")
    st.mark()
    def p1_stage(i, carried_only=False):
        u = i & 1; kp = i >> 1
        pu = (i - 1) & 1; pkp = ((i - 1) & 3) >> 1
        mf = []
        for f in (5, 6, 7):
            for j in range(3):
                a = qacc(8 * pu + f, j)
                mf.append((f"{MF} {vr(a)}, {vr(ABUF+4*f)}, {vr(BBUF+12*pkp+4*j)}, {vr(a)}", []))
        if carried_only:
            for t, _ in mf: I(t)
            return
        for f in range(5):
            for j in range(3):
                a = qacc(8 * u + f, j)
                mf.append((f"{MF} {vr(a)}, {vr(ABUF+4*f)}, {vr(BBUF+12*kp+4*j)}, {vr(a)}", [('A', f), ('B', j)]))
        rd = []
        def rdA(f):
            sg = f >> 2; j = f & 3
            mi = {5: 3, 6: 6, 7: 9}.get(f, 0)
            for e in range(2):
                rd.append((('A', f), f"ds_read_b64_tr_b16 {vr(ABUF+4*f+2*e,2)}, v{1+j} offset:{i*16384+sg*4096+e*2048}", mi))
        rdA(0)
        if u == 0:
            for j in range(3):
                rd.append((('B', j), f"ds_read_b128 {vr(BBUF+12*kp+4*j)}, v{5+kp} offset:{j*2048}", 0))
        for f in range(1, 8): rdA(f)
        I("s_barrier")
        run_sched(b, mf, rd, 2, lambda idx: (2 if idx % 3 == 0 else 1))
        b.drain_lgk()
    b.loop_begin("L_p1")
    for i in range(4):
        p1_stage(i)
        if i == 2:
            I("v_add_u32 v5, s5, v5"); I("v_add_u32 v6, s5, v6"); I("s_sub_u32 s5, 0, s5")
    I("s_add_u32 s6, s6, 1"); I("s_cmp_lt_u32 s6, 7")
    b.loop_end("s_cbranch_scc1 L_p1")
    I("s_barrier")
    p1_stage(0, carried_only=True)
    st.mark()
    QP = 40
    qp = lambda T, j: QP + (T * 3 + j) * 4
    for T in range(8):
        for j in range(3):
            d = qp(T, j); a0 = qacc(2 * T, j); a1 = qacc(2 * T + 1, j)
            I(f"v_cvt_pk_bf16_f32 v{d}, v{a0}, v{a0+1}"); I(f"v_cvt_pk_bf16_f32 v{d+1}, v{a0+2}, v{a0+3}")
            I(f"v_cvt_pk_bf16_f32 v{d+2}, v{a1}, v{a1+1}"); I(f"v_cvt_pk_bf16_f32 v{d+3}, v{a1+2}, v{a1+3}")
        for j in range(3):
            d = qp(T, j)
            I(f"v_permlane16_swap_b32 v{d}, v{d+2}"); I(f"v_permlane16_swap_b32 v{d+1}, v{d+3}")
    if o.dump == 'q':
        dump_regs(b, QP, 96)
    I("v_bfe_u32 v1, v0, 3, 1"); I("v_lshlrev_b32 v1, 10, v1")
    I("v_and_b32 v7, 7, v0"); I("v_lshl_or_b32 v1, v7, 7, v1")
    I("v_bfe_u32 v7, v0, 5, 1"); I("v_bfe_u32 v6, v0, 1, 1"); I("v_xor_b32 v7, v7, v6"); I("v_lshl_or_b32 v1, v7, 4, v1")
    I("v_bfe_u32 v7, v0, 4, 1"); I("v_lshl_or_b32 v1, v7, 5, v1")
    I("v_bfe_u32 v7, v0, 2, 1"); I("v_lshl_or_b32 v1, v7, 6, v1")
    I("s_mul_i32 s4, s68, 12288"); I(f"s_add_u32 s4, s4, {R}")
    I("v_add_u32 v1, s4, v1"); I("v_xor_b32 v2, 64, v1")
    I("v_add_u32 v3, 49152, v1"); I("v_add_u32 v4, 49152, v2")
    st.mark()
    SACC = 136; KBUF = 208
    sacc = lambda kt, j: SACC + (kt * 3 + j) * 4
    def krd(T, kt):
        dq = T >> 1; pos = (dq + 1) & 3
        off = pos * 24576 + kt * 2048
        reg = 1 + (T & 1)
        if off >= 49152: off -= 49152; reg += 2
        buf = KBUF + ((T & 1) * 6 + kt) * 4
        return f"ds_read_b128 {vr(buf)}, v{reg} offset:{off}"
    tok = {}
    for kt in range(6): tok[(0, kt)] = I(krd(0, kt))
    for T in range(8):
        if T == 4: I("s_barrier")
        for kt in range(6):
            b.wait_lgk(tok[(T, kt)])
            buf = KBUF + ((T & 1) * 6 + kt) * 4
            for j in range(3):
                a = sacc(kt, j)
                I(f"{MF} {vr(a)}, {vr(buf)}, {vr(qp(T,j))}, {'0' if T == 0 else vr(a)}")
                if j == 0 and T < 7: tok[(T + 1, kt)] = I(krd(T + 1, kt))
    b.drain_lgk()
    I("s_barrier")
    st.mark()
    PP = 208
    pp = lambda U, j: PP + (U * 3 + j) * 4
    I(f"s_mov_b32 s7, {hex(f32bits(math.log2(math.e) / 16.0))}")
    M = [8, 9, 10]; Tm = [11, 12, 13]; L = [14, 15, 16]
    vals = lambda j: [sacc(kt, j) + r for kt in range(6) for r in range(4)]
    for step in range(12):
        for j in range(3):
            v = vals(j)
            if step == 0: I(f"v_max3_f32 v{M[j]}, v{v[0]}, v{v[1]}, v{v[2]}")
            elif step < 11: I(f"v_max3_f32 v{M[j]}, v{M[j]}, v{v[2*step+1]}, v{v[2*step+2]}")
            else: I(f"v_max_f32 v{M[j]}, v{M[j]}, v{v[23]}")
    for sw in ("v_permlane16_swap_b32", "v_permlane32_swap_b32"):
        for j in range(3): I(f"v_mov_b32 v{Tm[j]}, v{M[j]}")
        for j in range(3): I(f"{sw} v{M[j]}, v{Tm[j]}")
        for j in range(3): I(f"v_max_f32 v{M[j]}, v{M[j]}, v{Tm[j]}")
    for j in range(3): I(f"v_mul_f32 v{M[j]}, s7, v{M[j]}")
    for k in range(24):
        for j in range(3):
            v = vals(j)[k]; I(f"v_fma_f32 v{v}, v{v}, s7, -v{M[j]}")
        for j in range(3):
            v = vals(j)[k]; I(f"v_exp_f32 v{v}, v{v}")
        if k >= 1:
            for j in range(3):
                v = vals(j)
                if k == 1: pass
                elif k == 2: I(f"v_add_f32 v{L[j]}, v{v[0]}, v{v[1]}")
                else: I(f"v_add_f32 v{L[j]}, v{L[j]}, v{v[k-1]}")
    for j in range(3): I(f"v_add_f32 v{L[j]}, v{L[j]}, v{vals(j)[23]}")
    for sw in ("v_permlane16_swap_b32", "v_permlane32_swap_b32"):
        for j in range(3): I(f"v_mov_b32 v{Tm[j]}, v{L[j]}")
        for j in range(3): I(f"{sw} v{L[j]}, v{Tm[j]}")
        for j in range(3): I(f"v_add_f32 v{L[j]}, v{L[j]}, v{Tm[j]}")
    for j in range(3): I(f"v_rcp_f32 v{L[j]}, v{L[j]}")
    for kt in range(6):
        for j in range(3):
            a = sacc(kt, j)
            for r in range(4): I(f"v_mul_f32 v{a+r}, v{a+r}, v{L[j]}")
            d = pp(kt >> 1, j) + (kt & 1) * 2
            I(f"v_cvt_pk_bf16_f32 v{d}, v{a}, v{a+1}"); I(f"v_cvt_pk_bf16_f32 v{d+1}, v{a+2}, v{a+3}")
    if o.dump == 'p':
        dump_regs(b, PP, 36)
    trbase(b, 1, 7)
    I("s_mul_i32 s4, s68, 49152"); I(f"s_add_u32 s4, s4, {R}")
    I("v_add_u32 v1, s4, v1")
    for j in (1, 2, 3): I(f"v_xor_b32 v{1+j}, {j<<5}, v1")
    st.mark()
    I("s_barrier")
    st.mark()
    VBUF = 8; NVB = 8; OACC = 136; OP = 40
    oacc = lambda t, j: OACC + ((t % 6) * 3 + j) * 4
    op = lambda kap, j: OP + (kap * 3 + j) * 4
    frs = [(t, U) for t in range(16) for U in range(3)]
    def vrd(n):
        t, U = frs[n]; dq = t >> 2; j = t & 3; buf = VBUF + (n % NVB) * 4
        I(f"ds_read_b64_tr_b16 {vr(buf,2)}, v{1+j} offset:{(dq*12+4*U)*1024}")
        return I(f"ds_read_b64_tr_b16 {vr(buf+2,2)}, v{1+j} offset:{(dq*12+4*U+2)*1024}")
    def ocvt(t):
        L_ = []
        for j in range(3):
            a = oacc(t, j); d = op(t >> 1, j) + (t & 1) * 2
            L_.append(f"v_cvt_pk_bf16_f32 v{d}, v{a}, v{a+1}"); L_.append(f"v_cvt_pk_bf16_f32 v{d+1}, v{a+2}, v{a+3}")
        return L_
    LA = 4
    tok = {}
    for n in range(LA): tok[n] = vrd(n)
    pend = []
    for n, (t, U) in enumerate(frs):
        b.wait_lgk(tok[n])
        buf = VBUF + (n % NVB) * 4
        for j in range(3):
            a = oacc(t, j)
            I(f"{MF} {vr(a)}, {vr(buf)}, {vr(pp(U,j))}, {'0' if U == 0 else vr(a)}")
            if j == 0 and n + LA < len(frs): tok[n + LA] = vrd(n + LA)
            if j >= 1 and U >= 1:
                for _ in range(2 if j == 1 else 1):
                    if pend: I(pend.pop(0))
        if U == 2: pend += ocvt(t)
    for x in pend: I(x)
    b.drain_lgk()
    I("v_lshlrev_b32 v5, 4, v0")
    I("s_mul_i32 s4, s68, 49152"); I("s_mul_i32 s5, s69, 3072"); I("s_add_u32 s4, s4, s5"); I(f"s_add_u32 s4, s4, {R}")
    I("v_add_u32 v5, s4, v5")
    st.mark()
    I("s_barrier")
    zs = list(range(136, 256))
    for kap in range(8):
        for j in range(3):
            I(f"ds_write_b128 v5, {vr(op(kap,j))} offset:{kap*6144+j*1024}")
            for _ in range(5):
                if zs: I(f"v_mov_b32 v{zs.pop(0)}, 0")
    trbase(b, 6, 7)
    I("s_lshl_b32 s4, s3, 12")
    I("v_add_u32 v1, s4, v6")
    for j in (1, 2, 3): I(f"v_xor_b32 v{1+j}, {j<<5}, v1")
    for m in range(3):
        I("s_mul_i32 s4, s3, 3"); I(f"s_add_u32 s4, s4, {m}")
        I("s_and_b32 s5, s4, 3"); I("s_lshl_b32 s5, s5, 5")
        I("s_lshr_b32 s4, s4, 2"); I("s_lshl_b32 s4, s4, 12")
        I(f"v_xor_b32 v{36+m}, s5, v6"); I(f"v_add_u32 v{36+m}, s4, v{36+m}")
    b.drain_lgk()
    I("v_lshlrev_b32 v5, 4, v0"); I(f"v_add_u32 v5, {R}, v5")
    for r in list(range(88, 136)) + list(range(8, 36)) + list(range(64, 88)): I(f"v_mov_b32 v{r}, 0")
    I("s_mov_b32 s6, 0")
    st.mark()
    A4 = 8; B4 = 40; ACC4 = 88
    acc4 = lambda m, q: ACC4 + (m * 6 + q) * 4
    def p4_stage(i, carried_only=False):
        u = i & 1; kp = i >> 1
        pkp = ((i - 1) & 3) >> 1
        carried = (5, 6) if u == 0 else (2, 3)
        ckp = pkp
        mine = (0, 1) if u == 0 else (4,)
        allf = (0, 1, 2, 3) if u == 0 else (4, 5, 6)
        mf = []
        for f in carried:
            for q in range(6):
                a = acc4(f, q)
                mf.append((f"{MF} {vr(a)}, {vr(A4+4*f)}, {vr(B4+24*ckp+4*q)}, {vr(a)}", []))
        if carried_only:
            for t, _ in mf: I(t)
            return
        for f in mine:
            for q in range(6):
                a = acc4(f, q)
                mf.append((f"{MF} {vr(a)}, {vr(A4+4*f)}, {vr(B4+24*kp+4*q)}, {vr(a)}", [('A', f), ('B', q)]))
        rd = []
        def rdA(f):
            areg = 1 + f if f < 4 else 36 + f - 4
            for e in range(2):
                rd.append((('A', f), f"ds_read_b64_tr_b16 {vr(A4+4*f+2*e,2)}, v{areg} offset:{i*16384+e*2048}", 0))
        rdA(allf[0])
        if u == 0:
            for q in range(6):
                rd.append((('B', q), f"ds_read_b128 {vr(B4+24*kp+4*q)}, v5 offset:{kp*6144+q*1024}", 0))
        for f in allf[1:]: rdA(f)
        I("s_barrier")
        run_sched(b, mf, rd, 2, lambda idx: 1)
        b.drain_lgk()
    b.loop_begin("L_p4")
    for i in range(4):
        p4_stage(i)
        if i == 2: I("v_add_u32 v5, 12288, v5")
    I("s_add_u32 s6, s6, 1"); I("s_cmp_lt_u32 s6, 8")
    b.loop_end("s_cbranch_scc1 L_p4")
    p4_stage(0, carried_only=True)
    st.mark()
    I("v_lshlrev_b32 v5, 4, v0")
    I("s_lshl_b32 s4, s38, 4"); I("s_add_u32 s4, s4, s40"); I("s_lshl_b32 s4, s4, 3"); I("s_add_u32 s4, s4, s39")
    I(f"s_mul_i32 s4, s4, {PART}")
    I(f"s_mul_i32 s5, s3, {4*3072}"); I("s_add_u32 s5, s5, s4")
    I(f"s_mul_i32 s7, s3, {3*3072}"); I("s_add_u32 s7, s7, s4"); I(f"s_add_u32 s7, s7, {16*3072}")
    k = 0
    for m in range(7):
        if m == 4: I("s_mov_b32 s5, s7")
        for jp in range(3):
            d = 40 + (k % 12) * 4; k += 1
            a0 = acc4(m, 2 * jp); a1 = acc4(m, 2 * jp + 1)
            I(f"v_cvt_pk_bf16_f32 v{d}, v{a0}, v{a0+1}"); I(f"v_cvt_pk_bf16_f32 v{d+1}, v{a0+2}, v{a0+3}")
            I(f"v_cvt_pk_bf16_f32 v{d+2}, v{a1}, v{a1+1}"); I(f"v_cvt_pk_bf16_f32 v{d+3}, v{a1+2}, v{a1+3}")
            if k == 13: I("s_waitcnt vmcnt(6)")
            I(f"buffer_store_dwordx4 {vr(d)}, v5, {SWS}, s5 offen offset:{jp*1024} {o.stflags}")
        I("s_add_u32 s5, s5, 3072")
    if o.stamp:
        I("s_waitcnt vmcnt(0)")
    st.mark()
    st.dump(True)
    I("s_endpgm")

def dump_regs(b, base, n):
    I = b.I
    I("s_lshl_b32 s4, s2, 2"); I("s_add_u32 s4, s4, s3"); I(f"s_mul_i32 s4, s4, {n*256}"); I(f"s_add_u32 s4, s4, {40<<20}")
    I("v_lshlrev_b32 v7, 2, v0")
    for r in range(n):
        I(f"buffer_store_dword v{base+r}, v7, {SWS}, s4 offen")
        I("s_add_u32 s4, s4, 256")
    I("s_waitcnt vmcnt(0)")

import struct
def f32bits(x): return struct.unpack("<I", struct.pack("<f", x))[0]

def src_pattern(b, dst, tmp, tmp2, pitch, kind):
    I = b.I
    if kind == 'wq':
        I(f"v_bfe_u32 v{tmp}, v0, 3, 2"); I(f"v_bfe_u32 v{tmp2}, v0, 5, 1"); I(f"v_lshl_or_b32 v{tmp}, v{tmp2}, 3, v{tmp}")
    else:
        I(f"v_lshrrev_b32 v{tmp}, 3, v0")
    I(f"v_mul_u32_u24 v{dst}, {pitch}, v{tmp}")
    if kind == 'k':
        I(f"v_bfe_u32 v{tmp}, v0, 4, 1"); I(f"v_bfe_u32 v{tmp2}, v0, 5, 1"); I(f"v_lshl_or_b32 v{tmp}, v{tmp2}, 2, v{tmp}")
    else:
        I(f"v_bfe_u32 v{tmp}, v0, 4, 2"); I(f"v_lshlrev_b32 v{tmp}, 1, v{tmp}")
    I(f"v_and_b32 v{tmp2}, 7, v0"); I(f"v_xor_b32 v{tmp}, v{tmp}, v{tmp2}")
    I(f"v_lshl_add_u32 v{dst}, v{tmp}, 4, v{dst}")

def ring_loader(b, o):
    I = b.I; st = Stamps(b, o)
    b.raw("@fence"); b.label("L_RL")
    I("s_sub_u32 s68, s3, 4")
    src_pattern(b, 1, 10, 11, 8192, 'wq')
    for i, ro in enumerate((0, 16, 4, 20)):
        if i: I(f"v_add_u32 v{1+i}, {ro*8192 - i*1024}, v1")
    src_pattern(b, 5, 10, 11, 896, 'w')
    for i in (1, 2, 3): I(f"v_add_u32 v{5+i}, {i*6144}, v5")
    I("s_lshl_b32 s4, s39, 10"); I("s_lshl_b32 s5, s68, 9"); I("s_add_u32 s4, s4, s5")
    I("s_lshl_b32 s8, s68, 13")
    I("s_mul_i32 s9, s40, 86016"); I(f"s_mul_i32 s5, s68, {6*7168}"); I("s_add_u32 s9, s9, s5")
    I("s_mul_i32 s10, s68, 6144"); I(f"s_add_u32 s10, s10, {XBUF}")
    I("s_mov_b32 s11, 12288")
    I(f"s_mul_i32 s12, s39, {512*896}")
    I("s_lshl_b32 s13, s68, 8")
    I(f"s_mul_i32 s15, s68, {2*8*896}")
    I("s_lshl_b32 s16, s68, 11")
    q = []
    def G_wq(slot, u, adv):
        for sg in range(2):
            I(f"s_add_u32 m0, s8, {slot*16384 + sg*4096}")
            I(f"s_add_u32 s5, s4, {u*256 + sg*128}")
            for i in range(4):
                I(f"buffer_load_dwordx4 v{1+i}, {SWQ}, s5 offen offset:{i*1024} lds")
        if adv: I(f"s_add_u32 s4, s4, {32*8192}")
        q.append(8)
    def X():
        I("s_mov_b32 m0, s10")
        for i in range(4): I(f"buffer_load_dwordx4 v{5+i}, {SX}, s9 offen offset:{i*1024} lds")
        I("s_add_u32 m0, s10, 4096"); I(f"s_add_u32 s5, s9, {4*7168}")
        for i in range(2): I(f"buffer_load_dwordx4 v{5+i}, {SX}, s5 offen offset:{i*1024} lds")
        I("s_add_u32 s9, s9, 128"); I("s_add_u32 s10, s10, s11"); I("s_sub_u32 s11, 0, s11")
    def G_wo(slot, u):
        if u == 0:
            for sg in range(2):
                I(f"s_add_u32 m0, s8, {slot*16384 + sg*4096}")
                I("s_add_u32 s5, s12, s13")
                if sg: I("s_add_u32 s5, s5, 128")
                for i in range(4):
                    I(f"buffer_load_dwordx4 v{5+i}, {SWO}, s5 offen offset:{i*1024} lds")
        else:
            I(f"s_add_u32 m0, s8, {slot*16384}")
            I("s_add_u32 s5, s12, s13"); I("s_add_u32 s5, s5, 512")
            for i in range(4):
                I(f"buffer_load_dwordx4 v{5+i}, {SWO}, s5 offen offset:{i*1024} lds")
            I(f"s_add_u32 m0, s16, {slot*16384 + 4096}")
            I("s_add_u32 s5, s12, s15"); I(f"s_add_u32 s5, s5, {512+128}")
            for i in range(2):
                I(f"buffer_load_dwordx4 v{5+i}, {SWO}, s5 offen offset:{i*1024} lds")
            I(f"s_add_u32 s12, s12, {32*896}")
    st.mark()
    X(); G_wq(0, 0, False); G_wq(1, 1, True); G_wq(2, 0, False)
    I("s_mov_b32 s6, 0")
    b.loop_begin("L_rl1")
    I("s_waitcnt vmcnt(16)"); I("s_barrier"); X(); G_wq(3, 1, True)
    I("s_waitcnt vmcnt(22)"); I("s_barrier"); G_wq(0, 0, False)
    I("s_waitcnt vmcnt(22)"); I("s_barrier"); G_wq(1, 1, True)
    I("s_waitcnt vmcnt(16)"); I("s_barrier"); G_wq(2, 0, False)
    I("s_add_u32 s6, s6, 1"); I("s_cmp_lt_u32 s6, 6")
    b.loop_end("s_cbranch_scc1 L_rl1")
    I("s_waitcnt vmcnt(16)"); I("s_barrier"); G_wq(3, 1, True)
    I("s_waitcnt vmcnt(16)"); I("s_barrier"); G_wo(0, 0)
    I("s_waitcnt vmcnt(16)"); I("s_barrier"); G_wo(1, 1)
    I("s_waitcnt vmcnt(14)"); I("s_barrier"); G_wo(2, 0)
    st.mark()
    I("s_barrier"); G_wo(3, 1)
    I("s_barrier")
    I("s_barrier")
    I("s_barrier")
    I("s_barrier")
    st.mark()
    I("s_waitcnt vmcnt(20)"); I("s_barrier")
    I("s_mov_b32 s6, 0")
    b.loop_begin("L_rl4")
    I("s_waitcnt vmcnt(14)"); I("s_barrier"); G_wo(0, 0)
    I("s_waitcnt vmcnt(14)"); I("s_barrier"); G_wo(1, 1)
    I("s_waitcnt vmcnt(14)"); I("s_barrier"); G_wo(2, 0)
    I("s_waitcnt vmcnt(14)"); I("s_barrier"); G_wo(3, 1)
    I("s_add_u32 s6, s6, 1"); I("s_cmp_lt_u32 s6, 7")
    b.loop_end("s_cbranch_scc1 L_rl4")
    I("s_waitcnt vmcnt(14)"); I("s_barrier")
    I("s_waitcnt vmcnt(6)"); I("s_barrier")
    I("s_waitcnt vmcnt(0)"); I("s_barrier")
    st.mark()
    st.dump()
    I("s_endpgm")

def kv_loader(b, o):
    I = b.I; st = Stamps(b, o)
    b.raw("@fence"); b.label("L_KL")
    I("s_sub_u32 s68, s3, 6")
    src_pattern(b, 1, 10, 11, 512, 'k')
    for i in (1, 2, 3): I(f"v_add_u32 v{1+i}, {i*3072}, v1")
    src_pattern(b, 5, 10, 11, 512, 'w')
    I("s_lshl_b32 s4, s40, 4"); I("s_lshl_b32 s5, s39, 1"); I("s_add_u32 s4, s4, s5"); I("s_add_u32 s4, s4, s68")
    I("s_mul_i32 s4, s4, 49152")
    if o.kvsame: I("s_mul_i32 s4, s68, 49152")
    I("s_mul_i32 s8, s68, 12288"); I(f"s_add_u32 s8, s8, {R}")
    KD = 16; VR = 64
    nt = " nt" if o.kvnt else ""
    loads = []
    for kg in range(3):
        for dq in range(3):
            for i in range(4):
                pre = []
                if i == 0:
                    pre = [f"s_add_u32 m0, s8, {(dq+1)*24576 + kg*4096}", f"s_add_u32 s5, s4, {kg*16384 + dq*128}"]
                loads.append(pre + [f"buffer_load_dwordx4 v{1+i}, {SK}, s5 offen offset:{i*1024}{nt} lds"])
        for i in range(4):
            ko = kg * 4 + i
            loads.append([f"s_add_u32 s7, s4, {ko*4096}", f"buffer_load_dwordx4 {vr(KD+4*ko)}, v1, {SK}, s7 offen offset:384{nt}"])
    for ko in range(12):
        for dq in range(4):
            pre = [f"s_add_u32 s7, s4, {ko*4096}"] if dq == 0 else []
            loads.append(pre + [f"buffer_load_dwordx4 {vr(VR+4*(dq*12+ko))}, v5, {SV}, s7 offen offset:{dq*128}{nt}"])
    li = 0
    def issue(n):
        nonlocal li
        for _ in range(n):
            if li < len(loads):
                for t in loads[li]: I(t)
                li += 1
    st.mark()
    if o.warm:
        warmup(b, o)
    issue(o.kpre)
    for n in range(28):
        I("s_barrier")
        issue(o.kfirst if n == 0 else o.kper)
    st.mark()
    issue(len(loads))
    assert li == len(loads), li
    I("v_lshlrev_b32 v6, 4, v0"); I("v_add_u32 v7, s8, v6")
    I("s_mul_i32 s5, s68, 49152"); I(f"s_add_u32 s5, s5, {R}"); I("v_add_u32 v8, s5, v6")
    I("s_waitcnt vmcnt(48)")
    st.mark()
    I("s_barrier")
    for ko in range(12): I(f"ds_write_b128 v7, {vr(KD+4*ko)} offset:{ko*1024}")
    b.drain_lgk()
    I("s_barrier")
    I("s_barrier")
    st.mark()
    for ko in range(12):
        I(f"s_waitcnt vmcnt({44-4*ko})")
        for dq in range(4):
            I(f"ds_write_b128 v8, {vr(VR+4*(dq*12+ko))} offset:{(dq*12+ko)*1024}")
    b.drain_lgk()
    st.mark()
    I("s_barrier")
    st.dump()
    I("s_endpgm")

def warmup(b, o):
    I = b.I
    I("v_lshlrev_b32 v9, 7, v0")
    I("s_lshl_b32 s5, s43, 1"); I("s_add_u32 s5, s5, s68"); I(f"s_mul_i32 s5, s5, {168*128}")
    I("s_mul_i32 s7, s40, 86016"); I("s_add_u32 s5, s5, s7")
    for i in range(3):
        I(f"buffer_load_dword v{12}, v9, {SX}, s5 offen")
        I("s_add_u32 s5, s5, 8192")
    I("v_lshrrev_b32 v13, 3, v0"); I("v_lshlrev_b32 v13, 13, v13"); I("v_and_b32 v14, 7, v0"); I("v_lshl_or_b32 v13, v14, 7, v13")
    I("s_mul_i32 s5, s40, 28"); I("s_mul_i32 s7, s68, 14"); I("s_add_u32 s5, s5, s7"); I("s_lshl_b32 s5, s5, 13")
    I("s_lshl_b32 s7, s39, 10"); I("s_add_u32 s5, s5, s7")
    for i in range(2):
        I(f"buffer_load_dword v{12}, v13, {SWQ}, s5 offen")
        I("s_add_u32 s5, s5, 65536")
    I(f"s_mul_i32 s5, s39, {512*896}"); I("s_mul_i32 s7, s40, 28672"); I("s_add_u32 s5, s5, s7")
    I("s_mul_i32 s7, s68, 14336"); I("s_add_u32 s5, s5, s7")
    for i in range(2):
        I(f"buffer_load_dword v{12}, v9, {SWO}, s5 offen")
        I("s_add_u32 s5, s5, 8192")

def reduce_kernel(b, o):
    I = b.I
    b.raw("@fence")
    b.raw(".p2align 8"); b.raw(".type red_kernel,@function"); b.label("red_kernel")
    I("s_cmp_ge_u32 s2, 336"); I("s_cbranch_scc1 L_rend")
    if o.stamp: I("s_memrealtime s[24:25]")
    I("s_load_dwordx2 s[4:5], s[0:1], 80")
    I("s_load_dwordx2 s[8:9], s[0:1], 96")
    I("v_lshrrev_b32 v1, 6, v0"); I("v_and_b32 v0, 63, v0"); I("v_readfirstlane_b32 s3, v1")
    I("s_lshl_b32 s12, s2, 2"); I("s_add_u32 s12, s12, s3")
    I(f"s_mov_b32 s13, {(2**32 + 13)//14 + 0}")
    I("s_mul_hi_u32 s14, s12, s13")
    I("s_mul_i32 s15, s14, 14"); I("s_sub_u32 s15, s12, s15")
    I(f"s_mov_b32 s13, {(2**32 + 2)//3}")
    I("s_mul_hi_u32 s16, s14, s13")
    I("s_mul_i32 s17, s16, 3"); I("s_sub_u32 s17, s14, s17")
    I("s_mov_b32 s6, 2752512"); I("s_mov_b32 s7, 0x20000")
    I(f"s_mov_b32 s10, {256*PART}"); I("s_mov_b32 s11, 0x20000")
    I(f"s_mul_i32 s18, s16, {8*PART}"); I("s_mul_i32 s19, s15, 6144"); I("s_add_u32 s18, s18, s19")
    I("s_lshl_b32 s19, s17, 10"); I("s_add_u32 s18, s18, s19")
    I("v_lshlrev_b32 v2, 4, v0")
    I("s_waitcnt lgkmcnt(0)")
    for p in range(8):
        I(f"buffer_load_dwordx4 {vr(8+8*p)}, v2, s[8:11], s18 offen {o.ldflags}")
        I(f"buffer_load_dwordx4 {vr(12+8*p)}, v2, s[8:11], s18 offen offset:3072 {o.ldflags}")
        I(f"s_add_u32 s18, s18, {PART}")
    I("s_and_b32 s19, s16, 15"); I("s_mul_i32 s19, s19, 96"); I("s_lshl_b32 s20, s17, 5"); I("s_add_u32 s19, s19, s20")
    I("s_mul_i32 s19, s19, 1792")
    I("s_lshr_b32 s20, s16, 4"); I("s_mul_i32 s20, s20, 896"); I("s_add_u32 s19, s19, s20")
    I("s_lshl_b32 s20, s15, 6"); I("s_add_u32 s19, s19, s20")
    I("s_add_u32 s21, s19, 28672")
    I("v_and_b32 v3, 15, v0"); I("v_mul_u32_u24 v3, 1792, v3")
    I("v_bfe_u32 v4, v0, 5, 1"); I("v_lshl_add_u32 v3, v4, 4, v3")
    I("v_bfe_u32 v4, v0, 4, 1"); I("v_lshl_add_u32 v3, v4, 5, v3")
    I("s_mov_b32 s22, 0xffff0000")
    AC = 72
    for p in range(8):
        I(f"s_waitcnt vmcnt({14-2*p})")
        for r in range(8):
            src = 8 + 8 * p + r
            if p == 0:
                I(f"v_lshlrev_b32 v{AC+2*r}, 16, v{src}"); I(f"v_and_b32 v{AC+2*r+1}, s22, v{src}")
            else:
                I(f"v_lshlrev_b32 v5, 16, v{src}"); I(f"v_and_b32 v6, s22, v{src}")
                I(f"v_add_f32 v{AC+2*r}, v{AC+2*r}, v5"); I(f"v_add_f32 v{AC+2*r+1}, v{AC+2*r+1}, v6")
    for h in range(2):
        d = 8 + 4 * h
        for k, r in enumerate((2 * h, 2 * h + 1, 4 + 2 * h, 5 + 2 * h)):
            I(f"v_cvt_pk_bf16_f32 v{d+k}, v{AC+2*r}, v{AC+2*r+1}")
    for h in range(2):
        d = 8 + 4 * h
        I(f"v_permlane16_swap_b32 v{d}, v{d+2}"); I(f"v_permlane16_swap_b32 v{d+1}, v{d+3}")
    I("buffer_store_dwordx4 v[8:11], v3, s[4:7], s19 offen")
    I("buffer_store_dwordx4 v[12:15], v3, s[4:7], s21 offen")
    if o.stamp and not o.spin:
        I("s_waitcnt vmcnt(0)"); I("s_memrealtime s[26:27]"); I("s_waitcnt lgkmcnt(0)")
        I("s_mov_b32 s10, 0x4000000")
        I("s_lshl_b32 s12, s12, 3"); I(f"s_add_u32 s12, s12, {WS_STAMP + 131072}")
        I("v_mov_b32 v1, 0"); I("v_mov_b32 v2, s24"); I("v_mov_b32 v3, s26")
        I("buffer_store_dwordx2 v[2:3], v1, s[8:11], s12 offen")
        if o.dbg:
            I("s_load_dwordx2 s[8:9], s[0:1], 88"); I("s_mov_b32 s10, 256")
            I("s_waitcnt lgkmcnt(0)")
            I("s_mov_b64 exec, 1")
            I("s_cmp_lg_u32 s3, 0"); I("s_cbranch_scc1 L_rend")
            I("v_sub_u32 v2, 0, v2")
            I("buffer_atomic_umax v2, v1, s[8:11], 0 offen offset:48")
            I("buffer_atomic_umax v3, v1, s[8:11], 0 offen offset:52")
    if o.spin:
        I("s_cmp_lg_u32 s12, 0"); I("s_cbranch_scc1 L_rend")
        I(f"s_add_u32 s8, s8, {WS_STAMP}"); I("s_addc_u32 s9, s9, 0")
        I("s_load_dword s28, s[8:9], 56"); I("s_waitcnt lgkmcnt(0)")
        if o.probe >= 0 and o.probe < 13:
            I(f"s_load_dwordx2 s[30:31], s[8:9], {4*o.probe + 512*o.probewg}"); I("s_waitcnt lgkmcnt(0)")
            I("s_sub_u32 s30, s31, s30"); I("s_lshr_b32 s30, s30, 2"); I("s_add_u32 s28, s28, s30")
        elif o.probe == 14:
            I(f"s_load_dwordx2 s[30:31], s[8:9], {56 + 512*o.probewg}"); I("s_waitcnt lgkmcnt(0)")
            I("s_sub_u32 s30, s31, s30"); I("s_lshl_b32 s30, s30, 1"); I("s_add_u32 s28, s28, s30")
        elif o.probe == 15:
            I("s_sub_u32 s30, s24, s28"); I("s_lshl_b32 s30, s30, 1"); I("s_add_u32 s28, s28, s30")
        I(f"s_add_u32 s28, s28, {o.spin}")
        b.label("L_spin")
        I("s_memrealtime s[26:27]"); I("s_waitcnt lgkmcnt(0)")
        I("s_sub_u32 s26, s26, s28"); I(f"s_cmp_lt_i32 s26, 0"); I("s_cbranch_scc1 L_spin")
    b.label("L_rend")
    I("s_endpgm")

def kd(name, nv, ns):
    return f""".amdhsa_kernel {name}
  .amdhsa_next_free_vgpr {nv}
  .amdhsa_next_free_sgpr {ns}
  .amdhsa_accum_offset {(nv+3)//4*4}
  .amdhsa_group_segment_fixed_size 0
  .amdhsa_kernarg_size 104
  .amdhsa_user_sgpr_count 2
  .amdhsa_user_sgpr_kernarg_segment_ptr 1
  .amdhsa_system_sgpr_workgroup_id_x 1
.end_amdhsa_kernel
"""

def gen(o):
    b = Builder()
    hdr = f"""; fused attention block: K1 = Qproj+attn+Oproj partials (2 heads / WG), K2 = reduce over head pairs
; @launch kernel={NAME}_kernel grid=(256,1,1) block=(512,1,1) lds=163840
; @launch kernel=red_kernel grid=(336,1,1) block=(256,1,1) lds=0
.amdgcn_target "amdgcn-amd-amdhsa--gfx950"
.text
.globl {NAME}_kernel
.p2align 8
.type {NAME}_kernel,@function
"""
    b.label(f"{NAME}_kernel")
    prologue(b, o)
    compute(b, o)
    ring_loader(b, o)
    kv_loader(b, o)
    b.label("L_end"); b.I("s_endpgm")
    reduce_kernel(b, o)
    tail = '.section .rodata,"a"\n.p2align 6\n' + kd(f"{NAME}_kernel", 256, 100) + ".p2align 6\n" + kd("red_kernel", 88, 32)
    if o.nored: hdr = hdr.replace("; @launch kernel=red_kernel grid=(336,1,1) block=(256,1,1) lds=0\n", "")
    return hdr + b.text() + tail

if __name__ == "__main__":
    ap = argparse.ArgumentParser()
    ap.add_argument("-o", default="cdna_kernels/" + NAME + ".s")
    ap.add_argument("--stamp", action="store_true")
    ap.add_argument("--dump", default="")
    ap.add_argument("--kvnt", type=int, default=0)
    ap.add_argument("--warm", type=int, default=1)
    ap.add_argument("--kpre", type=int, default=0)
    ap.add_argument("--kfirst", type=int, default=24)
    ap.add_argument("--kper", type=int, default=3)
    ap.add_argument("--kvsame", type=int, default=0)
    ap.add_argument("--dbg", type=int, default=0)
    ap.add_argument("--nored", type=int, default=0)
    ap.add_argument("--spin", type=int, default=0)
    ap.add_argument("--probe", type=int, default=-1)
    ap.add_argument("--probewg", type=int, default=0)
    ap.add_argument("--stflags", default="")
    ap.add_argument("--ldflags", default="")
    o = ap.parse_args()
    open(o.o, "w").write(gen(o))
```

```python
def auto(bursts, resume=2, pre="G0 G1 G2", tail=None):
    sc = {'pre': pre}
    g = len([x for x in pre.split() if x[0] == 'G'])
    hold = -1
    xn = 1
    for n in range(28):
        it = []
        if n >= hold:
            while g <= min(n + 3, 27):
                it.append(f"G{g}"); g += 1
            if xn <= 6 and 4 * (xn - 2) + 3 <= n and (4 * xn - 1 <= g): it.append(f"X{xn}"); xn += 1
        if n in bursts:
            it.append(bursts[n]); hold = n + resume
        sc[n] = " ".join(it)
    sc.update(tail or {})
    return sc
def get(name):
    if name == 'a':
        return auto({0: "S2 XS2 M4", 4: "S3 XS3 M4", 8: "S4 XS4 M4", 12: "S5 XS5 M4", 16: "S6 XS6 M4", 20: "M6", 24: "M6", 27: "M2"}, 3,
                    tail={'BP1': "M5", 'BK3': "M3", 'BP2': "M24 P"})
    if name == 'b':
        return auto({0: "S2 XS2 M4", 4: "S3 XS3 M4", 8: "S4 XS4 M4", 12: "S5 XS5 M4", 16: "S6 XS6 M4", 20: "M6", 24: "M6", 27: "M2"}, 2,
                    tail={'BP1': "M5", 'BK3': "M3", 'BP2': "M24 P"})
    if name == 'c':
        return auto({0: "S2 XS2 XS3 M2", 5: "S3 S4 XS4 M3", 10: "S5 XS5 M4", 15: "S6 XS6 M4", 20: "M6", 24: "M6", 27: "M3"}, 2,
                    tail={'BP1': "M5", 'BK2': "M2", 'BK3': "M3", 'BP2': "M24 P"})
    if name == 'd':
        return auto({0: "S2 XS2 XS3 M2", 6: "S3 S4 XS4 M3", 12: "S5 S6 XS5 XS6 M1", 18: "M6", 24: "M6", 27: "M3"}, 2,
                    tail={'BP1': "M5", 'BK2': "M2", 'BK3': "M3", 'BP2': "M24 P"})
if __name__ == "__main__":
    import sys
    print(get(sys.argv[1]))
```

```python
import sys, math, argparse
from asmb import Builder
NAME = "concat_heads__mha_block_cached__gqa_block_cached__near_ridge"

R = 65536; XBUF = 65536
WS_STAMP = 32 << 20
PART = 86016

class Opt: pass

def vr(a, n=4): return f"v[{a}:{a+n-1}]"

def prologue(b, o):
    I = b.I
    I("s_cmp_ge_u32 s2, 256"); I("s_cbranch_scc1 L_end")
    if o.stamp: I("s_memrealtime s[96:97]")
    I("s_load_dwordx8 s[4:11], s[0:1], 0")
    I("s_load_dwordx2 s[12:13], s[0:1], 32")
    I("s_load_dwordx8 s[16:23], s[0:1], 40")
    I("s_load_dwordx2 s[24:25], s[0:1], 72")
    I("s_load_dwordx2 s[26:27], s[0:1], 96")
    I("v_lshrrev_b32 v1, 6, v0")
    I("v_and_b32 v0, 63, v0")
    I("v_readfirstlane_b32 s3, v1")
    I("s_and_b32 s41, s2, 7")
    I("s_lshr_b32 s42, s2, 3")
    I("s_lshr_b32 s38, s41, 2")
    I("s_and_b32 s39, s41, 3"); I("s_lshl_b32 s39, s39, 1")
    I("s_and_b32 s43, s42, 1"); I("s_or_b32 s39, s39, s43")
    I("s_lshr_b32 s40, s42, 1")
    for srd, size in ((44, 1376256), (48, 12582912), (52, 12582912), (56, 3670016), (60, 3670016), (64, 64 << 20)):
        I(f"s_mov_b32 s{srd+2}, {size}"); I(f"s_mov_b32 s{srd+3}, 0x20000")
    I("s_waitcnt lgkmcnt(0)")
    I("s_cmp_eq_u32 s38, 0")
    for srd, a, bb in ((44, 4, 16), (48, 6, 18), (52, 8, 20), (56, 10, 22), (60, 12, 24)):
        I(f"s_cselect_b32 s{srd}, s{a}, s{bb}"); I(f"s_cselect_b32 s{srd+1}, s{a+1}, s{bb+1}")
    I("s_mov_b32 s64, s26"); I("s_mov_b32 s65, s27")
    I("s_cmp_ge_u32 s3, 4"); I("s_cbranch_scc1 L_RL")

SX, SK, SV, SWQ, SWO, SWS = "s[44:47]", "s[48:51]", "s[52:55]", "s[56:59]", "s[60:63]", "s[64:67]"

class Stamps:
    def __init__(self, b, o): self.b = b; self.o = o; self.n = 0
    def mark(self):
        if not self.o.stamp: return
        assert self.n < 13
        self.b.I(f"s_memtime s[{70+2*self.n}:{71+2*self.n}]")
        self.b.drain_lgk(force=True)
        self.n += 1
    def fine(self):
        if not self.o.fine: return
        self.nf = getattr(self, 'nf', 0)
        assert self.nf < 64
        self.b.I("s_memtime s[30:31]"); self.b.drain_lgk(force=True)
        self.b.I(f"v_writelane_b32 v255, s30, {self.nf}")
        self.nf += 1
    def dump(self, dbg=False):
        if not self.o.stamp: return
        I = self.b.I
        if self.o.fine and getattr(self, 'nf', 0):
            I("s_lshl_b32 s4, s2, 3"); I("s_add_u32 s4, s4, s3"); I("s_lshl_b32 s4, s4, 8"); I(f"s_add_u32 s4, s4, {WS_STAMP + 262144}")
            I("v_lshlrev_b32 v1, 2, v0")
            I(f"buffer_store_dword v255, v1, {SWS}, s4 offen")
        I("s_memrealtime s[98:99]")
        I("s_waitcnt lgkmcnt(0)")
        I("s_lshl_b32 s4, s2, 3"); I("s_add_u32 s4, s4, s3"); I("s_lshl_b32 s4, s4, 6"); I(f"s_add_u32 s4, s4, {WS_STAMP}")
        I("v_mov_b32 v1, 0")
        for k in range(self.n):
            I(f"v_mov_b32 v2, s{70+2*k}")
            I(f"buffer_store_dword v2, v1, {SWS}, s4 offen offset:{4*k}")
        I("v_mov_b32 v2, s96"); I(f"buffer_store_dword v2, v1, {SWS}, s4 offen offset:56")
        I("v_mov_b32 v2, s98"); I(f"buffer_store_dword v2, v1, {SWS}, s4 offen offset:60")
        if self.o.dbg and dbg:
            I("s_load_dwordx2 s[8:9], s[0:1], 88"); I("s_mov_b32 s10, 256"); I("s_mov_b32 s11, 0x20000")
            I("s_waitcnt lgkmcnt(0)")
            I("s_add_u32 s8, s8, 512"); I("s_addc_u32 s9, s9, 0"); I("s_mov_b64 exec, 1")
            I("s_lshl_b32 s4, s2, 3"); I("s_add_u32 s4, s4, s3"); I("s_cmp_lg_u32 s4, 0"); I("s_cbranch_scc1 L_nodbg")
            for k in range(1, self.n):
                I(f"s_sub_u32 s5, s{70+2*k}, s{68+2*k}"); I("v_mov_b32 v2, s5")
                I(f"buffer_store_dword v2, v1, s[8:11], 0 offen offset:{4*(k-1)}")
            I("v_mov_b32 v2, s96"); I(f"buffer_store_dword v2, v1, s[8:11], 0 offen offset:40")
            self.b.label("L_nodbg")
            I("s_cmp_lg_u32 s3, 0"); I("s_cbranch_scc1 L_end")
            I("v_mov_b32 v2, s98"); I(f"buffer_atomic_umax v2, v1, s[8:11], 0 offen offset:44")

def interleave(b, mfmas, reads, first=2, per=1, pre=None):
    pass

def trbase(b, dst, tmp):
    I = b.I
    I(f"v_lshrrev_b32 v{dst}, 5, v0"); I(f"v_lshlrev_b32 v{dst}, 10, v{dst}")
    I(f"v_bfe_u32 v{tmp}, v0, 2, 3"); I(f"v_lshl_or_b32 v{dst}, v{tmp}, 7, v{dst}")
    I(f"v_bfe_u32 v{tmp}, v0, 3, 2"); I(f"v_lshl_or_b32 v{dst}, v{tmp}, 5, v{dst}")
    I(f"v_and_b32 v{tmp}, 3, v0"); I(f"v_lshl_or_b32 v{dst}, v{tmp}, 3, v{dst}")

def run_sched(b, mf, rd, first, per_gap):
    tok = {}
    ri = 0
    def emit_reads(n, idx):
        nonlocal ri
        k = 0
        while k < n and ri < len(rd) and rd[ri][2] <= idx:
            key, text, _ = rd[ri]
            tok[key] = b.I(text); ri += 1; k += 1
    emit_reads(first, 0)
    for i, (text, need) in enumerate(mf):
        for key in need:
            if key in tok: b.wait_lgk(tok[key])
            else:
                assert key is None or key not in [r[0] for r in rd], f"mfma {i} needs read {key} not yet issued"
        b.I(text)
        emit_reads(per_gap(i), i + 1)
    assert ri == len(rd), f"unissued reads {len(rd)-ri}"

MF = "v_mfma_f32_16x16x32_bf16"

def compute(b, o):
    I = b.I; st = Stamps(b, o)
    I("s_lshr_b32 s68, s3, 1"); I("s_and_b32 s69, s3, 1")
    ABUF = 8; BBUF = 40; QACC = 64
    qacc = lambda t, j: QACC + (t * 3 + j) * 4
    trbase(b, 1, 7)
    I("s_lshl_b32 s4, s68, 13")
    I("v_add_u32 v1, s4, v1")
    for j in (1, 2, 3): I(f"v_xor_b32 v{1+j}, {j<<5}, v1")
    I("v_bfe_u32 v5, v0, 3, 1"); I("v_lshlrev_b32 v5, 10, v5")
    I("v_and_b32 v7, 7, v0"); I("v_lshl_or_b32 v5, v7, 7, v5")
    I("v_lshrrev_b32 v7, 5, v0"); I("v_bfe_u32 v6, v0, 1, 2"); I("v_xor_b32 v7, v7, v6"); I("v_lshl_or_b32 v5, v7, 5, v5")
    I("v_bfe_u32 v7, v0, 4, 1"); I("v_lshl_or_b32 v5, v7, 4, v5")
    I("s_mul_i32 s4, s69, 6144"); I(f"s_add_u32 s4, s4, {XBUF}")
    I("v_add_u32 v5, s4, v5"); I("v_xor_b32 v6, 64, v5")
    for r in range(8, 256): I(f"v_mov_b32 v{r}, 0")
    I("s_mov_b32 s5, 12288")
    I("s_mov_b32 s6, 0")
    st.mark()
    def p1_stage(i, carried_only=False):
        u = i & 1; kp = i >> 1
        pu = (i - 1) & 1; pkp = ((i - 1) & 3) >> 1
        mf = []
        for f in (5, 6, 7):
            for j in range(3):
                a = qacc(8 * pu + f, j)
                mf.append((f"{MF} {vr(a)}, {vr(ABUF+4*f)}, {vr(BBUF+12*pkp+4*j)}, {vr(a)}", []))
        if carried_only:
            for t, _ in mf: I(t)
            return
        for f in range(5):
            for j in range(3):
                a = qacc(8 * u + f, j)
                mf.append((f"{MF} {vr(a)}, {vr(ABUF+4*f)}, {vr(BBUF+12*kp+4*j)}, {vr(a)}", [('A', f), ('B', j)]))
        rd = []
        def rdA(f):
            sg = f >> 2; j = f & 3
            mi = {5: 3, 6: 6, 7: 9}.get(f, 0)
            for e in range(2):
                rd.append((('A', f), f"ds_read_b64_tr_b16 {vr(ABUF+4*f+2*e,2)}, v{1+j} offset:{i*16384+sg*4096+e*2048}", mi))
        rdA(0)
        if u == 0:
            for j in range(3):
                rd.append((('B', j), f"ds_read_b128 {vr(BBUF+12*kp+4*j)}, v{5+kp} offset:{j*2048}", 0))
        for f in range(1, 8): rdA(f)
        I("s_barrier")
        run_sched(b, mf, rd, 2, lambda idx: (2 if idx % 3 == 0 else 1))
        b.drain_lgk()
    b.loop_begin("L_p1")
    for i in range(4):
        p1_stage(i)
        if i == 2:
            I("v_add_u32 v5, s5, v5"); I("v_add_u32 v6, s5, v6"); I("s_sub_u32 s5, 0, s5")
    I("s_add_u32 s6, s6, 1"); I("s_cmp_lt_u32 s6, 7")
    b.loop_end("s_cbranch_scc1 L_p1")
    I("s_barrier")
    p1_stage(0, carried_only=True)
    st.mark()
    QP = 40
    qp = lambda T, j: QP + (T * 3 + j) * 4
    for T in range(8):
        for j in range(3):
            d = qp(T, j); a0 = qacc(2 * T, j); a1 = qacc(2 * T + 1, j)
            I(f"v_cvt_pk_bf16_f32 v{d}, v{a0}, v{a0+1}"); I(f"v_cvt_pk_bf16_f32 v{d+1}, v{a0+2}, v{a0+3}")
            I(f"v_cvt_pk_bf16_f32 v{d+2}, v{a1}, v{a1+1}"); I(f"v_cvt_pk_bf16_f32 v{d+3}, v{a1+2}, v{a1+3}")
        for j in range(3):
            d = qp(T, j)
            I(f"v_permlane16_swap_b32 v{d}, v{d+2}"); I(f"v_permlane16_swap_b32 v{d+1}, v{d+3}")
    if o.dump == 'q':
        dump_regs(b, QP, 96)
    I("v_bfe_u32 v1, v0, 3, 1"); I("v_lshlrev_b32 v1, 10, v1")
    I("v_and_b32 v7, 7, v0"); I("v_lshl_or_b32 v1, v7, 7, v1")
    I("v_bfe_u32 v7, v0, 5, 1"); I("v_bfe_u32 v6, v0, 1, 1"); I("v_xor_b32 v7, v7, v6"); I("v_lshl_or_b32 v1, v7, 4, v1")
    I("v_bfe_u32 v7, v0, 4, 1"); I("v_lshl_or_b32 v1, v7, 5, v1")
    I("v_bfe_u32 v7, v0, 2, 1"); I("v_lshl_or_b32 v1, v7, 6, v1")
    I("s_mul_i32 s4, s68, 12288"); I(f"s_add_u32 s4, s4, {R}")
    I("v_add_u32 v1, s4, v1"); I("v_xor_b32 v2, 64, v1")
    I("v_add_u32 v3, 49152, v1"); I("v_add_u32 v4, 49152, v2")
    st.mark()
    SACC = 136; KBUF = 208
    sacc = lambda kt, j: SACC + (kt * 3 + j) * 4
    def krd(T, kt):
        dq = T >> 1; pos = (dq + 1) & 3
        off = pos * 24576 + kt * 2048
        reg = 1 + (T & 1)
        if off >= 49152: off -= 49152; reg += 2
        buf = KBUF + ((T & 1) * 6 + kt) * 4
        return f"ds_read_b128 {vr(buf)}, v{reg} offset:{off}"
    tok = {}
    for kt in range(6): tok[(0, kt)] = I(krd(0, kt))
    for T in range(8):
        if T == 3 and o.bk2: I("s_barrier")
        if T == (5 if o.bk2 else 4): I("s_barrier")
        for kt in range(6):
            b.wait_lgk(tok[(T, kt)])
            buf = KBUF + ((T & 1) * 6 + kt) * 4
            for j in range(3):
                a = sacc(kt, j)
                I(f"{MF} {vr(a)}, {vr(buf)}, {vr(qp(T,j))}, {'0' if T == 0 else vr(a)}")
                if j == 0 and T < 7: tok[(T + 1, kt)] = I(krd(T + 1, kt))
    b.drain_lgk()
    I("s_barrier")
    st.mark()
    PP = 208
    pp = lambda U, j: PP + (U * 3 + j) * 4
    I(f"s_mov_b32 s7, {hex(f32bits(math.log2(math.e) / 16.0))}")
    M = [8, 9, 10]; Tm = [11, 12, 13]; L = [14, 15, 16]
    vals = lambda j: [sacc(kt, j) + r for kt in range(6) for r in range(4)]
    for step in range(12):
        for j in range(3):
            v = vals(j)
            if step == 0: I(f"v_max3_f32 v{M[j]}, v{v[0]}, v{v[1]}, v{v[2]}")
            elif step < 11: I(f"v_max3_f32 v{M[j]}, v{M[j]}, v{v[2*step+1]}, v{v[2*step+2]}")
            else: I(f"v_max_f32 v{M[j]}, v{M[j]}, v{v[23]}")
    for sw in ("v_permlane16_swap_b32", "v_permlane32_swap_b32"):
        for j in range(3): I(f"v_mov_b32 v{Tm[j]}, v{M[j]}")
        for j in range(3): I(f"{sw} v{M[j]}, v{Tm[j]}")
        for j in range(3): I(f"v_max_f32 v{M[j]}, v{M[j]}, v{Tm[j]}")
    for j in range(3): I(f"v_mul_f32 v{M[j]}, s7, v{M[j]}")
    for k in range(24):
        for j in range(3):
            v = vals(j)[k]; I(f"v_fma_f32 v{v}, v{v}, s7, -v{M[j]}")
        for j in range(3):
            v = vals(j)[k]; I(f"v_exp_f32 v{v}, v{v}")
        if k >= 1:
            for j in range(3):
                v = vals(j)
                if k == 1: pass
                elif k == 2: I(f"v_add_f32 v{L[j]}, v{v[0]}, v{v[1]}")
                else: I(f"v_add_f32 v{L[j]}, v{L[j]}, v{v[k-1]}")
    for j in range(3): I(f"v_add_f32 v{L[j]}, v{L[j]}, v{vals(j)[23]}")
    for sw in ("v_permlane16_swap_b32", "v_permlane32_swap_b32"):
        for j in range(3): I(f"v_mov_b32 v{Tm[j]}, v{L[j]}")
        for j in range(3): I(f"{sw} v{L[j]}, v{Tm[j]}")
        for j in range(3): I(f"v_add_f32 v{L[j]}, v{L[j]}, v{Tm[j]}")
    for j in range(3): I(f"v_rcp_f32 v{L[j]}, v{L[j]}")
    for kt in range(6):
        for j in range(3):
            a = sacc(kt, j)
            for r in range(4): I(f"v_mul_f32 v{a+r}, v{a+r}, v{L[j]}")
            d = pp(kt >> 1, j) + (kt & 1) * 2
            I(f"v_cvt_pk_bf16_f32 v{d}, v{a}, v{a+1}"); I(f"v_cvt_pk_bf16_f32 v{d+1}, v{a+2}, v{a+3}")
    if o.dump == 'p':
        dump_regs(b, PP, 36)
    trbase(b, 1, 7)
    I("s_mul_i32 s4, s68, 49152"); I(f"s_add_u32 s4, s4, {R}")
    I("v_add_u32 v1, s4, v1")
    for j in (1, 2, 3): I(f"v_xor_b32 v{1+j}, {j<<5}, v1")
    st.mark()
    I("s_barrier")
    st.mark()
    VBUF = 8; NVB = 8; OACC = 136; OP = 40
    oacc = lambda t, j: OACC + ((t % 6) * 3 + j) * 4
    op = lambda kap, j: OP + (kap * 3 + j) * 4
    frs = [(t, U) for t in range(16) for U in range(3)]
    def vrd(n):
        t, U = frs[n]; dq = t >> 2; j = t & 3; buf = VBUF + (n % NVB) * 4
        I(f"ds_read_b64_tr_b16 {vr(buf,2)}, v{1+j} offset:{(dq*12+4*U)*1024}")
        return I(f"ds_read_b64_tr_b16 {vr(buf+2,2)}, v{1+j} offset:{(dq*12+4*U+2)*1024}")
    def ocvt(t):
        L_ = []
        for j in range(3):
            a = oacc(t, j); d = op(t >> 1, j) + (t & 1) * 2
            L_.append(f"v_cvt_pk_bf16_f32 v{d}, v{a}, v{a+1}"); L_.append(f"v_cvt_pk_bf16_f32 v{d+1}, v{a+2}, v{a+3}")
        return L_
    LA = 4
    tok = {}
    for n in range(LA): tok[n] = vrd(n)
    pend = []
    for n, (t, U) in enumerate(frs):
        b.wait_lgk(tok[n])
        buf = VBUF + (n % NVB) * 4
        for j in range(3):
            a = oacc(t, j)
            I(f"{MF} {vr(a)}, {vr(buf)}, {vr(pp(U,j))}, {'0' if U == 0 else vr(a)}")
            if j == 0 and n + LA == 24: I("s_barrier"); st.mark()
            if j == 0 and n + LA < len(frs): tok[n + LA] = vrd(n + LA)
            if j >= 1 and U >= 1:
                for _ in range(2 if j == 1 else 1):
                    if pend: I(pend.pop(0))
        if U == 2: pend += ocvt(t)
    for x in pend: I(x)
    b.drain_lgk()
    I("v_lshlrev_b32 v5, 4, v0")
    I("s_mul_i32 s4, s68, 49152"); I("s_mul_i32 s5, s69, 3072"); I("s_add_u32 s4, s4, s5"); I(f"s_add_u32 s4, s4, {R}")
    I("v_add_u32 v5, s4, v5")
    st.mark()
    I("s_barrier")
    zs = list(range(136, 256))
    for kap in range(8):
        for j in range(3):
            I(f"ds_write_b128 v5, {vr(op(kap,j))} offset:{kap*6144+j*1024}")
            for _ in range(5):
                if zs: I(f"v_mov_b32 v{zs.pop(0)}, 0")
    trbase(b, 6, 7)
    I("s_lshl_b32 s4, s3, 12")
    I("v_add_u32 v1, s4, v6")
    for j in (1, 2, 3): I(f"v_xor_b32 v{1+j}, {j<<5}, v1")
    for m in range(3):
        I("s_mul_i32 s4, s3, 3"); I(f"s_add_u32 s4, s4, {m}")
        I("s_and_b32 s5, s4, 3"); I("s_lshl_b32 s5, s5, 5")
        I("s_lshr_b32 s4, s4, 2"); I("s_lshl_b32 s4, s4, 12")
        I(f"v_xor_b32 v{36+m}, s5, v6"); I(f"v_add_u32 v{36+m}, s4, v{36+m}")
    b.drain_lgk()
    I("v_lshlrev_b32 v5, 4, v0"); I(f"v_add_u32 v5, {R}, v5")
    for r in list(range(88, 136)) + list(range(8, 36)) + list(range(64, 88)): I(f"v_mov_b32 v{r}, 0")
    I("s_mov_b32 s6, 0")
    st.mark()
    A4 = 8; B4 = 40; ACC4 = 88
    acc4 = lambda m, q: ACC4 + (m * 6 + q) * 4
    def p4_stage(i, carried_only=False):
        u = i & 1; kp = i >> 1
        pkp = ((i - 1) & 3) >> 1
        carried = (5, 6) if u == 0 else (2, 3)
        ckp = pkp
        mine = (0, 1) if u == 0 else (4,)
        allf = (0, 1, 2, 3) if u == 0 else (4, 5, 6)
        mf = []
        for f in carried:
            for q in range(6):
                a = acc4(f, q)
                mf.append((f"{MF} {vr(a)}, {vr(A4+4*f)}, {vr(B4+24*ckp+4*q)}, {vr(a)}", []))
        if carried_only:
            for t, _ in mf: I(t)
            return
        for f in mine:
            for q in range(6):
                a = acc4(f, q)
                mf.append((f"{MF} {vr(a)}, {vr(A4+4*f)}, {vr(B4+24*kp+4*q)}, {vr(a)}", [('A', f), ('B', q)]))
        rd = []
        def rdA(f):
            areg = 1 + f if f < 4 else 36 + f - 4
            for e in range(2):
                rd.append((('A', f), f"ds_read_b64_tr_b16 {vr(A4+4*f+2*e,2)}, v{areg} offset:{i*16384+e*2048}", 0))
        rdA(allf[0])
        if u == 0:
            for q in range(6):
                rd.append((('B', q), f"ds_read_b128 {vr(B4+24*kp+4*q)}, v5 offset:{kp*6144+q*1024}", 0))
        for f in allf[1:]: rdA(f)
        I("s_barrier")
        run_sched(b, mf, rd, 2, lambda idx: 1)
        b.drain_lgk()
    b.loop_begin("L_p4")
    for i in range(4):
        p4_stage(i)
        if i == 2: I("v_add_u32 v5, 12288, v5")
    I("s_add_u32 s6, s6, 1"); I("s_cmp_lt_u32 s6, 8")
    b.loop_end("s_cbranch_scc1 L_p4")
    p4_stage(0, carried_only=True)
    st.mark()
    I("v_lshlrev_b32 v5, 4, v0")
    I("s_lshl_b32 s4, s38, 4"); I("s_add_u32 s4, s4, s40"); I("s_lshl_b32 s4, s4, 3"); I("s_add_u32 s4, s4, s39")
    I(f"s_mul_i32 s4, s4, {PART}")
    I(f"s_mul_i32 s5, s3, {4*3072}"); I("s_add_u32 s5, s5, s4")
    I(f"s_mul_i32 s7, s3, {3*3072}"); I("s_add_u32 s7, s7, s4"); I(f"s_add_u32 s7, s7, {16*3072}")
    k = 0
    for m in range(7):
        if m == 4: I("s_mov_b32 s5, s7")
        for jp in range(3):
            d = 40 + (k % 12) * 4; k += 1
            a0 = acc4(m, 2 * jp); a1 = acc4(m, 2 * jp + 1)
            I(f"v_cvt_pk_bf16_f32 v{d}, v{a0}, v{a0+1}"); I(f"v_cvt_pk_bf16_f32 v{d+1}, v{a0+2}, v{a0+3}")
            I(f"v_cvt_pk_bf16_f32 v{d+2}, v{a1}, v{a1+1}"); I(f"v_cvt_pk_bf16_f32 v{d+3}, v{a1+2}, v{a1+3}")
            if k == 13: I("s_waitcnt vmcnt(6)")
            I(f"buffer_store_dwordx4 {vr(d)}, v5, {SWS}, s5 offen offset:{jp*1024} {o.stflags}")
        I("s_add_u32 s5, s5, 3072")
    if o.stamp:
        I("s_waitcnt vmcnt(0)")
    st.mark()
    st.dump(True)
    I("s_endpgm")

def dump_regs(b, base, n):
    I = b.I
    I("s_lshl_b32 s4, s2, 2"); I("s_add_u32 s4, s4, s3"); I(f"s_mul_i32 s4, s4, {n*256}"); I(f"s_add_u32 s4, s4, {40<<20}")
    I("v_lshlrev_b32 v7, 2, v0")
    for r in range(n):
        I(f"buffer_store_dword v{base+r}, v7, {SWS}, s4 offen")
        I("s_add_u32 s4, s4, 256")
    I("s_waitcnt vmcnt(0)")

import struct
def f32bits(x): return struct.unpack("<I", struct.pack("<f", x))[0]

def src_pattern(b, dst, tmp, tmp2, pitch, kind):
    I = b.I
    if kind == 'wq':
        I(f"v_bfe_u32 v{tmp}, v0, 3, 2"); I(f"v_bfe_u32 v{tmp2}, v0, 5, 1"); I(f"v_lshl_or_b32 v{tmp}, v{tmp2}, 3, v{tmp}")
    else:
        I(f"v_lshrrev_b32 v{tmp}, 3, v0")
    I(f"v_mul_u32_u24 v{dst}, {pitch}, v{tmp}")
    if kind == 'k':
        I(f"v_bfe_u32 v{tmp}, v0, 4, 1"); I(f"v_bfe_u32 v{tmp2}, v0, 5, 1"); I(f"v_lshl_or_b32 v{tmp}, v{tmp2}, 2, v{tmp}")
    else:
        I(f"v_bfe_u32 v{tmp}, v0, 4, 2"); I(f"v_lshlrev_b32 v{tmp}, 1, v{tmp}")
    I(f"v_and_b32 v{tmp2}, 7, v0"); I(f"v_xor_b32 v{tmp}, v{tmp}, v{tmp2}")
    I(f"v_lshl_add_u32 v{dst}, v{tmp}, 4, v{dst}")

def loader(b, o):
    I = b.I; st = Stamps(b, o)
    b.raw("@fence"); b.label("L_RL")
    I("s_sub_u32 s68, s3, 4")
    I("s_lshr_b32 s69, s68, 1")
    I("s_and_b32 s28, s68, 1")
    src_pattern(b, 5, 10, 11, 896, 'w')
    for i in (1, 2, 3): I(f"v_add_u32 v{5+i}, {i*6144}, v5")
    I("s_mul_i32 s17, s40, 86016"); I(f"s_mul_i32 s5, s68, {3*7168}"); I("s_add_u32 s9, s17, s5")
    I("s_mul_i32 s10, s68, 3072"); I(f"s_add_u32 s10, s10, {XBUF}")
    log = []
    done = [-1]
    nt = " nt" if o.kvnt else ""
    KD = 16; VD = 40; JK = 140
    def X(p):
        I(f"s_add_u32 m0, s10, {(p&1)*12288}")
        I(f"s_add_u32 s5, s9, {p*128}")
        for i in range(3): I(f"buffer_load_dwordx4 v{5+i}, {SX}, s5 offen offset:{i*1024} lds"); log.append(('X', p))
    st.mark(); st.fine()
    X(0)
    I("v_lshlrev_b32 v12, 4, v0")
    I("s_lshl_b32 s18, s40, 2"); I("s_add_u32 s18, s18, s68"); I("s_lshl_b32 s18, s18, 13")
    I("s_lshl_b32 s4, s39, 10"); I("s_add_u32 s18, s18, s4")
    def S(g):
        if g > 6: return
        I(f"s_add_u32 s5, s18, {g*64*8192}")
        I(f"buffer_load_dwordx4 {vr(JK)}, v12, {SWQ}, s5 offen"); log.append(('S', g))
    S(0); S(1)
    I("v_mul_u32_u24 v13, 896, v0"); I("v_cmp_gt_u32 vcc, 12, v0"); I("v_mov_b32 v14, 0x7f000000")
    I("v_cndmask_b32 v13, v14, v13, vcc")
    I(f"s_mul_i32 s19, s43, {48*896}"); I(f"s_mul_i32 s5, s68, {12*896}"); I("s_add_u32 s19, s19, s5"); I("s_add_u32 s19, s19, s17")
    def XS(p):
        if p > 6: return
        I(f"buffer_load_dword v{JK+4}, v13, {SX}, s19 offen offset:{p*128}"); log.append(('XS', p))
    XS(1)
    src_pattern(b, 1, 10, 11, 8192, 'wq')
    for i, ro in enumerate((0, 16, 4, 20)):
        if i: I(f"v_add_u32 v{1+i}, {ro*8192 - i*1024}, v1")
    I("s_lshl_b32 s5, s69, 9"); I("s_add_u32 s4, s4, s5")
    I("s_lshl_b32 s5, s28, 7"); I("s_add_u32 s4, s4, s5")
    I("s_lshl_b32 s8, s68, 12")
    def G(n):
        if n > 27: return
        kp = n >> 1; u = n & 1
        I(f"s_add_u32 m0, s8, {(n%4)*16384}")
        I(f"s_add_u32 s5, s4, {kp*32*8192 + u*256}")
        for i in range(4):
            I(f"buffer_load_dwordx4 v{1+i}, {SWQ}, s5 offen offset:{i*1024} lds"); log.append(('G', n))
    src_pattern(b, 9, 10, 11, 512, 'k')
    I("s_lshl_b32 s14, s40, 4"); I("s_lshl_b32 s5, s39, 1"); I("s_add_u32 s14, s14, s5"); I("s_add_u32 s14, s14, s69")
    I("s_mul_i32 s14, s14, 49152"); I("s_mul_i32 s5, s28, 24576"); I("s_add_u32 s14, s14, s5")
    I("s_mul_i32 s20, s69, 12288"); I("s_mul_i32 s5, s28, 6144"); I("s_add_u32 s20, s20, s5"); I(f"s_add_u32 s20, s20, {R}")
    def KP(u, dq):
        I(f"s_add_u32 s5, s14, {u*4096}")
        if dq < 3:
            I(f"s_add_u32 m0, s20, {(dq+1)*24576 + u*1024 - dq*128}")
            I(f"buffer_load_dwordx4 v9, {SK}, s5 offen offset:{dq*128}{nt} lds"); log.append(('K', u, dq))
        else:
            I(f"buffer_load_dwordx4 {vr(KD+4*u)}, v9, {SK}, s5 offen offset:384{nt}"); log.append(('K', u, dq))
    if o.korder == 'u': kl = [(u, dq) for u in range(6) for dq in range(4)]
    elif o.korder == 'h': kl = [(u, dq) for u in range(6) for dq in range(2)] + [(u, dq) for u in range(6) for dq in (2, 3)]
    elif o.korder == 't': kl = [(u, dq) for u in range(6) for dq in range(3)] + [(u, 3) for u in range(6)]
    else: kl = [(u, dq) for u in range(6) for dq in range(2)] + [(u, 2) for u in range(6)] + [(u, 3) for u in range(6)]
    ki = [0]
    I("v_bfe_u32 v15, v0, 3, 2"); I("v_lshlrev_b32 v15, 9, v15")
    I("v_lshrrev_b32 v10, 5, v0"); I("v_lshl_or_b32 v15, v10, 7, v15")
    I("v_and_b32 v10, 7, v0"); I("v_lshl_or_b32 v15, v10, 4, v15")
    vi = [0]
    def V(n):
        for _ in range(n):
            if vi[0] >= 24: return
            r = vi[0]; vi[0] += 1
            h = r // 12; rp = r % 12
            I(f"s_add_u32 s5, s14, {(rp>>1)*4096}")
            I(f"buffer_load_dwordx4 {vr(VD+4*r)}, v15, {SV}, s5 offen offset:{(rp&1)*2048 + h*256}{nt}"); log.append(('V', r))
    def KV(n):
        for _ in range(n):
            if ki[0] < 24: KP(*kl[ki[0]]); ki[0] += 1
            else: V(1)
    def act(items):
        for it in items.split():
            if it[0] == 'G': G(int(it[1:]))
            elif it[:2] == 'XS': XS(int(it[2:]))
            elif it[0] == 'X': X(int(it[1:]))
            elif it[0] == 'S': S(int(it[1:]))
            elif it[0] == 'M': KV(int(it[1:]))
            elif it == 'P': wo_prefetch()
            else: assert 0, it
    def setup2():
        I(f"s_mul_i32 s12, s39, {512*896}")
        I("s_lshl_b32 s13, s68, 7")
        I("s_mul_i32 s15, s68, 7168"); I("s_add_u32 s15, s15, 512")
        I("s_lshl_b32 s16, s68, 10")
        I("v_add_u32 v148, s20, v12")
        I("v_bfe_u32 v10, v0, 3, 2"); I("v_lshlrev_b32 v149, 7, v10")
        I("v_bfe_u32 v10, v0, 4, 1"); I("v_lshlrev_b32 v10, 1, v10"); I("v_and_b32 v11, 7, v0"); I("v_xor_b32 v10, v10, v11")
        I("v_lshl_or_b32 v149, v10, 4, v149")
        I("v_lshrrev_b32 v10, 5, v0"); I("v_mul_u32_u24 v10, 12288, v10"); I("v_add_u32 v149, v149, v10")
        I("s_mul_i32 s5, s69, 49152"); I("s_mul_i32 s7, s28, 6144"); I("s_add_u32 s5, s5, s7"); I(f"s_add_u32 s5, s5, {R}")
        I("v_add_u32 v149, s5, v149")
        I("v_xor_b32 v150, 64, v149"); I("v_add_u32 v150, 512, v150")
    def W(slot, u, tag):
        if u == 0:
            I(f"s_add_u32 m0, s8, {slot*16384}")
            I("s_add_u32 s5, s12, s13")
            for i in range(4):
                I(f"buffer_load_dwordx4 v{5+i}, {SWO}, s5 offen offset:{i*1024} lds"); log.append(('W', tag))
        else:
            I("s_add_u32 s5, s12, s15")
            for sg in range(3):
                I(f"s_add_u32 m0, s16, {slot*16384 + sg*4096 - sg*128}")
                I(f"buffer_load_dwordx4 v5, {SWO}, s5 offen offset:{sg*128} lds"); log.append(('W', tag))
            I(f"s_add_u32 s12, s12, {32*896}")
    def wait(tags):
        last = max(i for i, t in enumerate(log) if t in tags)
        if last <= done[0]: return
        n = min(63, len(log) - 1 - last)
        done[0] = len(log) - 1 - n
        I(f"s_waitcnt vmcnt({n})")
    def wo_prefetch():
        I("v_lshlrev_b32 v10, 7, v0")
        I(f"s_mul_i32 s5, s39, {512*896}"); I("s_mul_i32 s7, s40, 28672"); I("s_add_u32 s5, s5, s7")
        I("s_mul_i32 s7, s68, 7168"); I("s_add_u32 s5, s5, s7")
        I(f"buffer_load_dword v{JK+4}, v10, {SWO}, s5 offen"); log.append(('P', 0))
    import scheds
    sc = scheds.get(o.sched)
    def body():
        act(sc.get('pre', ''))
        setup2()
        gmax = {}
        for n in range(28):
            tags = {('G', n)}
            if n % 4 == 0: tags.add(('X', n // 4))
            st.fine()
            wait(tags)
            st.fine()
            I("s_barrier")
            for it in sc.get(n, '').split():
                if it[0] == 'G': assert int(it[1:]) <= n + 3
                if it[0] == 'X' and it[1] != 'S': assert 4 * (int(it[1:]) - 2) + 3 <= n
            act(sc.get(n, ''))
        early = (0, 1) if o.bk2 else (0, 1, 2)
        wait({('K', u, dq) for u in range(6) for dq in early})
        assert all(('K', u, dq) in log for u in range(6) for dq in early)
        st.mark()
        I("s_barrier")
        act(sc.get('BP1', ''))
        if o.bk2:
            assert all(('K', u, 2) in log for u in range(6))
            wait({('K', u, 2) for u in range(6)})
            I("s_barrier")
            act(sc.get('BK2', ''))
        assert all(('K', u, 3) in log for u in range(6))
        for u in range(6):
            wait({('K', u, 3)})
            I(f"ds_write_b128 v148, {vr(KD+4*u)} offset:{u*1024}")
        b.drain_lgk()
        st.mark()
        I("s_barrier")
        act(sc.get('BK3', ''))
        I("s_barrier")
        st.mark()
        act(sc.get('BP2', ''))
        for h in range(2):
            for rp in range(12):
                r = h * 12 + rp
                if rp % 2 == 0:
                    while ('V', r + 1) not in log: V(1)
                    wait({('V', r + 1)})
                I(f"ds_write_b128 v{149+(rp&1)}, {vr(VD+4*r)} offset:{h*24576 + (rp>>1)*1024}")
            b.drain_lgk()
            st.mark()
            I("s_barrier")
            act(sc.get('BV%d' % h, ''))
        assert ('P', 0) in log
        I("s_waitcnt vmcnt(0)")
    body()
    for n in range(4): W(n, n & 1, n)
    I("s_barrier")
    I("s_waitcnt vmcnt(10)"); I("s_barrier")
    I("s_mov_b32 s6, 0")
    b.loop_begin("L_rl4")
    I("s_waitcnt vmcnt(7)"); I("s_barrier"); W(0, 0, 0)
    I("s_waitcnt vmcnt(7)"); I("s_barrier"); W(1, 1, 0)
    I("s_waitcnt vmcnt(7)"); I("s_barrier"); W(2, 0, 0)
    I("s_waitcnt vmcnt(7)"); I("s_barrier"); W(3, 1, 0)
    I("s_add_u32 s6, s6, 1"); I("s_cmp_lt_u32 s6, 7")
    b.loop_end("s_cbranch_scc1 L_rl4")
    I("s_waitcnt vmcnt(7)"); I("s_barrier")
    I("s_waitcnt vmcnt(3)"); I("s_barrier")
    I("s_waitcnt vmcnt(0)"); I("s_barrier")
    st.mark()
    st.dump()
    I("s_endpgm")

def reduce_kernel(b, o):
    I = b.I
    b.raw("@fence")
    b.raw(".p2align 8"); b.raw(".type red_kernel,@function"); b.label("red_kernel")
    I("s_cmp_ge_u32 s2, 336"); I("s_cbranch_scc1 L_rend")
    if o.stamp: I("s_memrealtime s[24:25]")
    I("s_load_dwordx2 s[4:5], s[0:1], 80")
    I("s_load_dwordx2 s[8:9], s[0:1], 96")
    I("v_lshrrev_b32 v1, 6, v0"); I("v_and_b32 v0, 63, v0"); I("v_readfirstlane_b32 s3, v1")
    I("s_lshl_b32 s12, s2, 2"); I("s_add_u32 s12, s12, s3")
    I(f"s_mov_b32 s13, {(2**32 + 13)//14 + 0}")
    I("s_mul_hi_u32 s14, s12, s13")
    I("s_mul_i32 s15, s14, 14"); I("s_sub_u32 s15, s12, s15")
    I(f"s_mov_b32 s13, {(2**32 + 2)//3}")
    I("s_mul_hi_u32 s16, s14, s13")
    I("s_mul_i32 s17, s16, 3"); I("s_sub_u32 s17, s14, s17")
    I("s_mov_b32 s6, 2752512"); I("s_mov_b32 s7, 0x20000")
    I(f"s_mov_b32 s10, {256*PART}"); I("s_mov_b32 s11, 0x20000")
    I(f"s_mul_i32 s18, s16, {8*PART}"); I("s_mul_i32 s19, s15, 6144"); I("s_add_u32 s18, s18, s19")
    I("s_lshl_b32 s19, s17, 10"); I("s_add_u32 s18, s18, s19")
    I("v_lshlrev_b32 v2, 4, v0")
    I("s_waitcnt lgkmcnt(0)")
    for p in range(8):
        I(f"buffer_load_dwordx4 {vr(8+8*p)}, v2, s[8:11], s18 offen {o.ldflags}")
        I(f"buffer_load_dwordx4 {vr(12+8*p)}, v2, s[8:11], s18 offen offset:3072 {o.ldflags}")
        I(f"s_add_u32 s18, s18, {PART}")
    I("s_and_b32 s19, s16, 15"); I("s_mul_i32 s19, s19, 96"); I("s_lshl_b32 s20, s17, 5"); I("s_add_u32 s19, s19, s20")
    I("s_mul_i32 s19, s19, 1792")
    I("s_lshr_b32 s20, s16, 4"); I("s_mul_i32 s20, s20, 896"); I("s_add_u32 s19, s19, s20")
    I("s_lshl_b32 s20, s15, 6"); I("s_add_u32 s19, s19, s20")
    I("s_add_u32 s21, s19, 28672")
    I("v_and_b32 v3, 15, v0"); I("v_mul_u32_u24 v3, 1792, v3")
    I("v_bfe_u32 v4, v0, 5, 1"); I("v_lshl_add_u32 v3, v4, 4, v3")
    I("v_bfe_u32 v4, v0, 4, 1"); I("v_lshl_add_u32 v3, v4, 5, v3")
    I("s_mov_b32 s22, 0xffff0000")
    AC = 72
    for p in range(8):
        I(f"s_waitcnt vmcnt({14-2*p})")
        for r in range(8):
            src = 8 + 8 * p + r
            if p == 0:
                I(f"v_lshlrev_b32 v{AC+2*r}, 16, v{src}"); I(f"v_and_b32 v{AC+2*r+1}, s22, v{src}")
            else:
                I(f"v_lshlrev_b32 v5, 16, v{src}"); I(f"v_and_b32 v6, s22, v{src}")
                I(f"v_add_f32 v{AC+2*r}, v{AC+2*r}, v5"); I(f"v_add_f32 v{AC+2*r+1}, v{AC+2*r+1}, v6")
    for h in range(2):
        d = 8 + 4 * h
        for k, r in enumerate((2 * h, 2 * h + 1, 4 + 2 * h, 5 + 2 * h)):
            I(f"v_cvt_pk_bf16_f32 v{d+k}, v{AC+2*r}, v{AC+2*r+1}")
    for h in range(2):
        d = 8 + 4 * h
        I(f"v_permlane16_swap_b32 v{d}, v{d+2}"); I(f"v_permlane16_swap_b32 v{d+1}, v{d+3}")
    I("buffer_store_dwordx4 v[8:11], v3, s[4:7], s19 offen")
    I("buffer_store_dwordx4 v[12:15], v3, s[4:7], s21 offen")
    if o.stamp and not o.spin:
        I("s_waitcnt vmcnt(0)"); I("s_memrealtime s[26:27]"); I("s_waitcnt lgkmcnt(0)")
        I("s_mov_b32 s10, 0x4000000")
        I("s_lshl_b32 s12, s12, 3"); I(f"s_add_u32 s12, s12, {WS_STAMP + 131072}")
        I("v_mov_b32 v1, 0"); I("v_mov_b32 v2, s24"); I("v_mov_b32 v3, s26")
        I("buffer_store_dwordx2 v[2:3], v1, s[8:11], s12 offen")
        if o.dbg:
            I("s_load_dwordx2 s[8:9], s[0:1], 88"); I("s_mov_b32 s10, 256")
            I("s_waitcnt lgkmcnt(0)")
            I("s_mov_b64 exec, 1")
            I("s_cmp_lg_u32 s3, 0"); I("s_cbranch_scc1 L_rend")
            I("v_sub_u32 v2, 0, v2")
            I("buffer_atomic_umax v2, v1, s[8:11], 0 offen offset:48")
            I("buffer_atomic_umax v3, v1, s[8:11], 0 offen offset:52")
    if o.spin:
        I("s_cmp_lg_u32 s12, 0"); I("s_cbranch_scc1 L_rend")
        I(f"s_add_u32 s8, s8, {WS_STAMP}"); I("s_addc_u32 s9, s9, 0")
        I("s_load_dword s28, s[8:9], 56"); I("s_waitcnt lgkmcnt(0)")
        if o.probe >= 0 and o.probe < 13:
            I(f"s_load_dwordx2 s[30:31], s[8:9], {4*o.probe + 512*o.probewg}"); I("s_waitcnt lgkmcnt(0)")
            I("s_sub_u32 s30, s31, s30"); I("s_lshr_b32 s30, s30, 2"); I("s_add_u32 s28, s28, s30")
        elif o.probe == 14:
            I(f"s_load_dwordx2 s[30:31], s[8:9], {56 + 512*o.probewg}"); I("s_waitcnt lgkmcnt(0)")
            I("s_sub_u32 s30, s31, s30"); I("s_lshl_b32 s30, s30, 1"); I("s_add_u32 s28, s28, s30")
        elif o.probe == 15:
            I("s_sub_u32 s30, s24, s28"); I("s_lshl_b32 s30, s30, 1"); I("s_add_u32 s28, s28, s30")
        I(f"s_add_u32 s28, s28, {o.spin}")
        b.label("L_spin")
        I("s_memrealtime s[26:27]"); I("s_waitcnt lgkmcnt(0)")
        I("s_sub_u32 s26, s26, s28"); I(f"s_cmp_lt_i32 s26, 0"); I("s_cbranch_scc1 L_spin")
    b.label("L_rend")
    I("s_endpgm")

def kd(name, nv, ns):
    return f""".amdhsa_kernel {name}
  .amdhsa_next_free_vgpr {nv}
  .amdhsa_next_free_sgpr {ns}
  .amdhsa_accum_offset {(nv+3)//4*4}
  .amdhsa_group_segment_fixed_size 0
  .amdhsa_kernarg_size 104
  .amdhsa_user_sgpr_count 2
  .amdhsa_user_sgpr_kernarg_segment_ptr 1
  .amdhsa_system_sgpr_workgroup_id_x 1
.end_amdhsa_kernel
"""

def gen(o):
    b = Builder()
    hdr = f"""; fused attention block: K1 = Qproj+attn+Oproj partials (2 heads / WG), K2 = reduce over head pairs
; @launch kernel={NAME}_kernel grid=(256,1,1) block=(512,1,1) lds=163840
; @launch kernel=red_kernel grid=(336,1,1) block=(256,1,1) lds=0
.amdgcn_target "amdgcn-amd-amdhsa--gfx950"
.text
.globl {NAME}_kernel
.p2align 8
.type {NAME}_kernel,@function
"""
    b.label(f"{NAME}_kernel")
    prologue(b, o)
    compute(b, o)
    loader(b, o)
    b.label("L_end"); b.I("s_endpgm")
    reduce_kernel(b, o)
    tail = '.section .rodata,"a"\n.p2align 6\n' + kd(f"{NAME}_kernel", 256, 100) + ".p2align 6\n" + kd("red_kernel", 88, 32)
    if o.nored: hdr = hdr.replace("; @launch kernel=red_kernel grid=(336,1,1) block=(256,1,1) lds=0\n", "")
    return hdr + b.text() + tail

if __name__ == "__main__":
    ap = argparse.ArgumentParser()
    ap.add_argument("-o", default="cdna_kernels/" + NAME + ".s")
    ap.add_argument("--stamp", action="store_true")
    ap.add_argument("--dump", default="")
    ap.add_argument("--dbg", type=int, default=0)
    ap.add_argument("--nored", type=int, default=0)
    ap.add_argument("--spin", type=int, default=0)
    ap.add_argument("--probe", type=int, default=-1)
    ap.add_argument("--probewg", type=int, default=0)
    ap.add_argument("--kvnt", type=int, default=1)
    ap.add_argument("--fine", action="store_true")
    ap.add_argument("--sched", default="a")
    ap.add_argument("--korder", default="u")
    ap.add_argument("--bk2", type=int, default=0)
    ap.add_argument("--stflags", default="")
    ap.add_argument("--ldflags", default="")
    o = ap.parse_args()
    open(o.o, "w").write(gen(o))
```
